```python
import torch

def _softmax(x, axis=-1):
    return torch.softmax(x, dim=axis)
def _gelu(x):
    return torch.nn.functional.gelu(x, approximate="tanh")
def _silu(x):
    return torch.nn.functional.silu(x)
def _sigmoid(x):
    return torch.sigmoid(x)
def _layernorm(x, axis=-1, eps=1e-5):
    m = x.mean(dim=axis, keepdim=True)
    v = x.var(dim=axis, keepdim=True, unbiased=False)
    return (x - m) / torch.sqrt(v + eps)
def _scatter_add(tgt, idx, src, axis=0):
    return tgt.clone().index_add_(axis, idx, src)
def _segment_sum(src, seg, n):
    out = torch.zeros((n,) + src.shape[1:], dtype=src.dtype)
    return out.index_add_(0, seg, src)
def _pad(x, pw):
    flat = tuple(v for pair in reversed(pw) for v in pair)
    return torch.nn.functional.pad(x, flat)

kernel_name = 'standalone__swiglu_ffn__sampling'

def setup_inputs():

    _w = (lambda a: (lambda t: t.to(torch.bfloat16) if t.is_floating_point() else t)(torch.as_tensor(a)))
    B, S, D, F = 32, 32, 512, 1792
    return {
        "x": _w((lambda *s: torch.randn(*s, dtype=torch.bfloat16) * 0.05)(B, S, D)),
        "w_gate": _w((lambda *s: torch.randn(*s, dtype=torch.bfloat16) * 0.05)(D, F)),
        "w_up": _w((lambda *s: torch.randn(*s, dtype=torch.bfloat16) * 0.05)(D, F)),
        "w_down": _w((lambda *s: torch.randn(*s, dtype=torch.bfloat16) * 0.05)(F, D)),
    }

def reference(x, w_gate, w_up, w_down):
    g = _silu(x @ w_gate)
    u = x @ w_up
    return (g * u) @ w_down
```

```python
class Asm:
    def __init__(self):
        self.lines = []
    def __call__(self, s, *a):
        if a:
            s = s % a
        self.lines.append("    " + s)
    def label(self, name):
        self.lines.append(name + ":")
    def raw(self, s):
        self.lines.append(s)
    def comment(self, s):
        self.lines.append("    ; " + s)
    def text(self):
        return "\n".join(self.lines) + "\n"

def vr(b, n=1):
    return "v%d" % b if n == 1 else "v[%d:%d]" % (b, b + n - 1)
def ar(b, n=1):
    return "a%d" % b if n == 1 else "a[%d:%d]" % (b, b + n - 1)
def sr(b, n=1):
    return "s%d" % b if n == 1 else "s[%d:%d]" % (b, b + n - 1)

HEADER = """; Kernarg layout for this problem (56 bytes, ptrs only, base s[0:1]):
"""

def kernel_desc(name, vgpr, sgpr, accum):
    return """.amdhsa_kernel %s
  .amdhsa_next_free_vgpr %d
  .amdhsa_next_free_sgpr %d
  .amdhsa_accum_offset %d
  .amdhsa_group_segment_fixed_size 0
  .amdhsa_kernarg_size 56
  .amdhsa_user_sgpr_count 2
  .amdhsa_user_sgpr_kernarg_segment_ptr 1
  .amdhsa_system_sgpr_workgroup_id_x 1
.end_amdhsa_kernel
""" % (name, vgpr, sgpr, accum)

def kernel_head(name):
    return ".globl %s\n.p2align 8\n.type %s,@function\n%s:\n" % (name, name, name)
```

```python
import sys
from asmlib import *

STAMP = False
for a in sys.argv[2:]:
    if a == "stamp":
        STAMP = True

X_BYTES = 1024 * 512 * 2
W_BYTES = 512 * 1792 * 2
H_BYTES = 1024 * 1792 * 2
OUT_BYTES = 1024 * 512 * 2
STAMP_OFF = 8 << 20

def srd(a, d, lo, hi, nbytes):
    a("s_mov_b32 s%d, s%d", d, lo)
    a("s_and_b32 s%d, s%d, 0xffff", d + 1, hi)
    a("s_mov_b32 s%d, 0x%x", d + 2, nbytes)
    a("s_mov_b32 s%d, 0x20000", d + 3)

def stamp(a, idx, kern, sws_lo, vt0, vt1, stmp):
    if not STAMP:
        return
    a("s_memrealtime s[%d:%d]", stmp, stmp + 1)
    a("s_lshl_b32 s%d, s2, 6", stmp + 2)
    a("s_add_u32 s%d, s%d, 0x%x", stmp + 2, stmp + 2, STAMP_OFF + kern * 512 * 64 + idx * 8)
    a("s_waitcnt lgkmcnt(0)")
    a("v_mov_b32 v%d, s%d", vt0, stmp)
    a("v_mov_b32 v%d, s%d", vt0 + 1, stmp + 1)
    a("v_mov_b32 v%d, s%d", vt1, stmp + 2)
    a("v_cmp_eq_u32 vcc, 0, v0")
    a("s_and_saveexec_b64 s[%d:%d], vcc", stmp + 2, stmp + 3)
    a("s_cbranch_execz L_st_%d_%d", kern, idx)
    a("global_store_dwordx2 v%d, v[%d:%d], s[%d:%d]", vt1, vt0, vt0 + 1, sws_lo, sws_lo + 1)
    a.label("L_st_%d_%d" % (kern, idx))
    a("s_mov_b64 exec, s[%d:%d]", stmp + 2, stmp + 3)

def gen_k1():
    a = Asm()
    NST = 8
    NSLOT = 5
    SLOT = 32768
    sX, sG, sU, sH = 12, 16, 20, 24
    sW = 28
    sMB, sFB = 29, 30
    sM0X, sM0G = 31, 32
    sXO, sWO = 33, 34
    sT = 36
    sC = 44
    vL = 1
    vXO = 2
    vGO = 6
    vUO = 8
    vBA = 10
    vAA = 22
    vHO = 28
    vT = 29
    vFR = 36
    vAC = 68
    vE = 132
    a("s_cmp_ge_u32 s2, 224")
    a("s_cbranch_scc1 L_k1_end")
    a("s_load_dwordx4 s[4:7], s[0:1], 0")
    a("s_load_dwordx2 s[8:9], s[0:1], 16")
    a("s_load_dwordx2 s[10:11], s[0:1], 48")
    a("v_lshrrev_b32 v%d, 6, v0", vT)
    a("v_and_b32 v%d, 63, v0", vL)
    a("v_readfirstlane_b32 s%d, v%d", sW, vT)
    a("s_and_b32 s%d, s2, 1", sT)
    a("s_lshl_b32 s%d, s%d, 2", sT, sT)
    a("s_bfe_u32 s%d, s2, 0x20003", sT + 1)
    a("s_add_u32 s%d, s%d, s%d", sMB, sT, sT + 1)
    a("s_bfe_u32 s%d, s2, 0x20001", sT)
    a("s_mul_i32 s%d, s%d, 7", sT, sT)
    a("s_lshr_b32 s%d, s2, 5", sT + 1)
    a("s_add_u32 s%d, s%d, s%d", sFB, sT, sT + 1)
    a("v_lshrrev_b32 v%d, 3, v%d", vT, vL)
    a("v_lshrrev_b32 v%d, 4, v%d", vT + 1, vL)
    a("v_and_b32 v%d, 7, v%d", vT + 2, vL)
    a("v_xor_b32 v%d, v%d, v%d", vT + 3, vT + 2, vT + 1)
    a("v_lshlrev_b32 v%d, 4, v%d", vT + 3, vT + 3)
    a("v_lshl_add_u32 v%d, v%d, 10, v%d", vT + 3, vT, vT + 3)
    a("s_lshl_b32 s%d, s%d, 17", sT, sMB)
    a("s_lshl_b32 s%d, s%d, 15", sT + 1, sW)
    a("s_add_u32 s%d, s%d, s%d", sT, sT, sT + 1)
    a("v_add_u32 v%d, s%d, v%d", vXO, sT, vT + 3)
    a("v_xor_b32 v%d, 64, v%d", vXO + 1, vXO)
    a("v_add_u32 v%d, 0x2000, v%d", vXO + 1, vXO + 1)
    a("v_add_u32 v%d, 0x4000, v%d", vXO + 2, vXO)
    a("v_add_u32 v%d, 0x4000, v%d", vXO + 3, vXO + 1)
    a("v_and_b32 v%d, 2, v%d", vT + 3, vT)
    a("v_xor_b32 v%d, v%d, v%d", vT + 3, vT + 3, vT + 2)
    a("v_lshlrev_b32 v%d, 4, v%d", vT + 3, vT + 3)
    a("v_mul_u32_u24 v%d, 3584, v%d", vT + 4, vT)
    a("v_add_u32 v%d, v%d, v%d", vT + 3, vT + 3, vT + 4)
    a("s_mul_i32 s%d, s%d, %d", sT, sW, 16 * 3584)
    a("s_lshl_b32 s%d, s%d, 7", sT + 1, sFB)
    a("s_add_u32 s%d, s%d, s%d", sT, sT, sT + 1)
    a("v_add_u32 v%d, s%d, v%d", vGO, sT, vT + 3)
    a("v_add_u32 v%d, %d, v%d", vGO + 1, 8 * 3584, vGO)
    a("v_xor_b32 v%d, 64, v%d", vUO, vGO)
    a("v_xor_b32 v%d, 64, v%d", vUO + 1, vGO + 1)
    a("s_lshl_b32 s%d, s%d, 12", sM0X, sW)
    a("s_lshl_b32 s%d, s%d, 11", sM0G, sW)
    a("s_add_u32 s%d, s%d, 16384", sM0G, sM0G)
    a("s_waitcnt lgkmcnt(0)")
    srd(a, sX, 4, 5, X_BYTES)
    srd(a, sG, 6, 7, W_BYTES)
    srd(a, sU, 8, 9, W_BYTES)
    stamp(a, 0, 0, 10, vE, vE + 2, sT)

    def dma_stage(st):
        slot = (st % NSLOT) * SLOT
        a("s_mov_b32 s%d, %d", sXO, st * 128)
        a("s_mov_b32 s%d, %d", sWO, st * 64 * 3584)
        seq = []
        for j in range(2):
            seq.append((sM0G, slot + j * 1024, vGO + j, sG, sWO))
            seq.append((sM0G, slot + 8192 + j * 1024, vUO + j, sU, sWO))
        for i in range(4):
            seq.append((sM0X, slot + i * 1024, vXO + i, sX, sXO))
        return seq
    def emit_dma(d):
        base, off, vo, s, so = d
        a("s_add_u32 m0, s%d, %d", base, off)
        a("s_nop 0")
        a("buffer_load_dwordx4 v%d, s[%d:%d], s%d offen lds", vo, s, s + 3, so)
    for st in range(NSLOT):
        for d in dma_stage(st):
            emit_dma(d)
    srd(a, sH, 10, 11, H_BYTES)
    a("s_and_b32 s%d, s%d, 1", sT, sW)
    a("s_lshr_b32 s%d, s%d, 1", sT + 1, sW)
    a("v_and_b32 v%d, 31, v%d", vT, vL)
    a("v_lshlrev_b32 v%d, 7, v%d", vT, vT)
    a("s_lshl_b32 s%d, s%d, 13", sT + 2, sT)
    a("v_add_u32 v%d, s%d, v%d", vT, sT + 2, vT)
    a("v_lshrrev_b32 v%d, 5, v%d", vT + 1, vL)
    a("v_bfe_u32 v%d, v%d, 1, 3", vT + 2, vL)
    a("v_xor_b32 v%d, v%d, v%d", vT + 2, vT + 2, vT + 1)
    for s in range(4):
        a("v_xor_b32 v%d, %d, v%d", vT + 3, 2 * s, vT + 2)
        a("v_lshl_add_u32 v%d, v%d, 4, v%d", vBA + s, vT + 3, vT)
        a("v_add_u32 v%d, 0x10000, v%d", vBA + 4 + s, vBA + s)
        a("v_add_u32 v%d, 0x20000, v%d", vBA + 8 + s, vBA + s)
    a("v_bfe_u32 v%d, v%d, 2, 2", vT, vL)
    a("v_lshl_add_u32 v%d, v%d, 3, v%d", vT, vT + 1, vT)
    a("v_lshlrev_b32 v%d, 7, v%d", vT, vT)
    a("v_bfe_u32 v%d, v%d, 4, 1", vT + 2, vL)
    a("v_lshl_add_u32 v%d, v%d, 13, v%d", vT, vT + 2, vT)
    a("v_bfe_u32 v%d, v%d, 1, 1", vT + 3, vL)
    a("v_lshl_add_u32 v%d, v%d, 3, v%d", vT, vT + 3, vT)
    a("v_add_u32 v%d, 16384, v%d", vT, vT)
    a("v_bfe_u32 v%d, v%d, 3, 1", vT + 3, vL)
    a("v_lshlrev_b32 v%d, 1, v%d", vT + 3, vT + 3)
    a("v_lshl_add_u32 v%d, v%d, 2, v%d", vT + 3, vT + 2, vT + 3)
    a("v_and_b32 v%d, 1, v%d", vT + 4, vL)
    a("s_lshl_b32 s%d, s%d, 2", sT + 2, sT + 1)
    a("v_add_u32 v%d, s%d, v%d", vT + 4, sT + 2, vT + 4)
    a("v_xor_b32 v%d, v%d, v%d", vT + 4, vT + 4, vT + 3)
    a("v_lshl_add_u32 v%d, v%d, 4, v%d", vAA, vT + 4, vT)
    a("v_xor_b32 v%d, 32, v%d", vAA + 1, vAA)
    for g in (1, 2):
        a("v_add_u32 v%d, 0x%x, v%d", vAA + 2 * g, g * 0x10000, vAA)
        a("v_add_u32 v%d, 0x%x, v%d", vAA + 2 * g + 1, g * 0x10000, vAA + 1)
    a("s_lshl_b32 s%d, s%d, 1", sT + 2, sMB)
    a("s_add_u32 s%d, s%d, s%d", sT + 2, sT + 2, sT)
    a("s_mul_i32 s%d, s%d, 224", sT + 2, sT + 2)
    a("s_lshl_b32 s%d, s%d, 1", sT + 3, sFB)
    a("s_add_u32 s%d, s%d, s%d", sT + 3, sT + 3, sT + 1)
    a("s_lshl_b32 s%d, s%d, 1", sT + 3, sT + 3)
    a("s_add_u32 s%d, s%d, s%d", sT + 2, sT + 2, sT + 3)
    a("s_lshl_b32 s%d, s%d, 10", sT + 2, sT + 2)
    a("v_lshlrev_b32 v%d, 4, v%d", vHO, vL)
    a("v_add_u32 v%d, s%d, v%d", vHO, sT + 2, vHO)
    a("s_mov_b32 s%d, 0xbfb8aa3b", sC)
    a("s_mov_b32 s%d, 0xbfb8aa3b", sC + 1)

    def frag_reads(st, s, fs):
        slot = st % NSLOT
        grp = slot // 2
        so = (slot % 2) * SLOT
        f = vFR + 16 * fs
        g0 = ["ds_read_b64_tr_b16 v[%d:%d], v%d offset:%d" % (f, f + 1, vAA + 2 * grp, so + 2048 * s),
              "ds_read_b64_tr_b16 v[%d:%d], v%d offset:%d" % (f + 2, f + 3, vAA + 2 * grp, so + 2048 * s + 512),
              "ds_read_b128 v[%d:%d], v%d offset:%d" % (f + 8, f + 11, vBA + 4 * grp + s, so)]
        g1 = ["ds_read_b128 v[%d:%d], v%d offset:%d" % (f + 12, f + 15, vBA + 4 * grp + s, so + 4096),
              "ds_read_b64_tr_b16 v[%d:%d], v%d offset:%d" % (f + 4, f + 5, vAA + 2 * grp + 1, so + 2048 * s),
              "ds_read_b64_tr_b16 v[%d:%d], v%d offset:%d" % (f + 6, f + 7, vAA + 2 * grp + 1, so + 2048 * s + 512)]
        return g0, g1
    def mfma(ft, mt, fs, first):
        f = vFR + 16 * fs
        c = vAC + 16 * (2 * ft + mt)
        cs = "0" if first else "v[%d:%d]" % (c, c + 15)
        a("v_mfma_f32_32x32x16_bf16 v[%d:%d], v[%d:%d], v[%d:%d], %s", c, c + 15, f + 4 * ft, f + 4 * ft + 3,
          f + 8 + 4 * mt, f + 8 + 4 * mt + 3, cs)

    issued = NSLOT
    a("s_waitcnt vmcnt(%d)", min(63, (issued - 1) * 8))
    a("s_barrier")
    stamp(a, 1, 0, 10, vE, vE + 2, sT)
    g0, g1 = frag_reads(0, 0, 0)
    for r in g0 + g1:
        a(r)
    n = 0
    for st in range(NST):
        for s in range(4):
            fs = n & 1
            last = (st == NST - 1 and s == 3)
            pend = []
            if s == 3 and not last:
                a("s_waitcnt vmcnt(%d) lgkmcnt(0)", (issued - (st + 2)) * 8 + (0 if not STAMP else 0))
                a("s_barrier")
                if issued < NST:
                    pend = dma_stage(issued)
                    issued += 1
            else:
                a("s_waitcnt lgkmcnt(0)")
            if not last:
                nst, ns = (st, s + 1) if s < 3 else (st + 1, 0)
                g0, g1 = frag_reads(nst, ns, fs ^ 1)
            else:
                g0, g1 = [], []
            first = (n == 0)
            mfma(0, 0, fs, first)
            for r in g0: a(r)
            for d in pend[0:2]: emit_dma(d)
            mfma(0, 1, fs, first)
            for r in g1: a(r)
            for d in pend[2:4]: emit_dma(d)
            mfma(1, 0, fs, first)
            for d in pend[4:6]: emit_dma(d)
            mfma(1, 1, fs, first)
            for d in pend[6:8]: emit_dma(d)
            n += 1
    stamp(a, 2, 0, 10, vE, vE + 2, sT)
    a("s_nop 7")
    a("s_nop 7")
    for ft in range(2):
        for mt in range(2):
            c = vAC + 16 * (2 * ft + mt)
            e = vE + 8 * ((2 * ft + mt) & 1) * 2
            for j in range(0, 8, 2):
                a("v_pk_mul_f32 v[%d:%d], v[%d:%d], s[%d:%d]", e + j, e + j + 1, c + j, c + j + 1, sC, sC + 1)
            for j in range(8):
                a("v_exp_f32 v%d, v%d", e + j, e + j)
            for j in range(0, 8, 2):
                a("v_pk_mul_f32 v[%d:%d], v[%d:%d], v[%d:%d]", c + j, c + j + 1, c + j, c + j + 1, c + 8 + j, c + 9 + j)
            for j in range(0, 8, 2):
                a("v_pk_add_f32 v[%d:%d], v[%d:%d], 1.0 op_sel_hi:[1,0]", e + j, e + j + 1, e + j, e + j + 1)
            for j in range(8):
                a("v_rcp_f32 v%d, v%d", e + j, e + j)
            a("s_nop 0")
            for j in range(0, 8, 2):
                a("v_pk_mul_f32 v[%d:%d], v[%d:%d], v[%d:%d]", c + j, c + j + 1, c + j, c + j + 1, e + j, e + j + 1)
            for j in range(4):
                a("v_cvt_pk_bf16_f32 v%d, v%d, v%d", e + 8 + j, c + 2 * j, c + 2 * j + 1)
            if mt == 0:
                a("buffer_store_dwordx4 v[%d:%d], v%d, s[%d:%d], 0 offen offset:%d", e + 8, e + 11, vHO, sH, sH + 3, ft * 1024)
            else:
                a("s_mov_b32 s%d, %d", sT, 112 * 1024)
                a("buffer_store_dwordx4 v[%d:%d], v%d, s[%d:%d], s%d offen offset:%d", e + 8, e + 11, vHO, sH, sH + 3, sT, ft * 1024)
    if STAMP:
        a("s_waitcnt vmcnt(0)")
    stamp(a, 3, 0, 10, vE, vE + 2, sT)
    a.label("L_k1_end")
    a("s_endpgm")
    return a.text(), 168, 48, 168

def gen_k2():
    a = Asm()
    NS = 28
    sD, sH, sO = 12, 16, 20
    sW = 24
    sMB, sNB = 25, 26
    sM0 = 27
    sDO = 28
    sT = 36
    sK4 = 44
    vL = 1
    vHO = 2
    vDO = 4
    vAA = 5
    vT = 6
    vFA = 16
    vRA = 24
    vH = 32
    a("s_cmp_ge_u32 s2, 256")
    a("s_cbranch_scc1 L_k2_end")
    a("s_load_dwordx4 s[4:7], s[0:1], 24")
    a("s_load_dwordx2 s[10:11], s[0:1], 48")
    a("v_lshrrev_b32 v%d, 6, v0", vT)
    a("v_and_b32 v%d, 63, v0", vL)
    a("v_readfirstlane_b32 s%d, v%d", sW, vT)
    a("s_and_b32 s%d, s2, 1", sT)
    a("s_lshl_b32 s%d, s%d, 3", sT, sT)
    a("s_bfe_u32 s%d, s2, 0x10001", sT + 1)
    a("s_lshl_b32 s%d, s%d, 2", sT + 1, sT + 1)
    a("s_add_u32 s%d, s%d, s%d", sT, sT, sT + 1)
    a("s_bfe_u32 s%d, s2, 0x20003", sT + 1)
    a("s_add_u32 s%d, s%d, s%d", sMB, sT, sT + 1)
    a("s_bfe_u32 s%d, s2, 0x10002", sT)
    a("s_lshl_b32 s%d, s%d, 3", sT, sT)
    a("s_lshr_b32 s%d, s2, 5", sT + 1)
    a("s_add_u32 s%d, s%d, s%d", sNB, sT, sT + 1)
    a("s_mul_i32 s%d, s%d, 224", sT, sMB)
    a("s_mul_i32 s%d, s%d, 28", sT + 1, sW)
    a("s_add_u32 s%d, s%d, s%d", sT, sT, sT + 1)
    a("s_lshl_b32 s%d, s%d, 10", sT, sT)
    a("v_lshlrev_b32 v%d, 4, v%d", vHO, vL)
    a("v_add_u32 v%d, s%d, v%d", vHO, sT, vHO)
    a("v_add_u32 v%d, %d, v%d", vHO + 1, 112 * 1024, vHO)
    a("v_lshrrev_b32 v%d, 2, v%d", vT, vL)
    a("v_and_b32 v%d, 3, v%d", vT + 1, vL)
    a("v_lshlrev_b32 v%d, 4, v%d", vT + 1, vT + 1)
    a("v_lshl_add_u32 v%d, v%d, 10, v%d", vDO, vT, vT + 1)
    a("s_mul_i32 s%d, s%d, %d", sT, sW, 448 * 1024)
    a("s_lshl_b32 s%d, s%d, 6", sT + 1, sNB)
    a("s_add_u32 s%d, s%d, s%d", sT, sT, sT + 1)
    a("v_add_u32 v%d, s%d, v%d", vDO, sT, vDO)
    a("s_mul_i32 s%d, s%d, %d", sM0, sW, 28 * 1024)
    for i in range(7):
        a("s_mov_b32 s%d, %d", sK4 + i, 4096 * i)
    a("s_waitcnt lgkmcnt(0)")
    srd(a, sD, 4, 5, W_BYTES)
    srd(a, sH, 10, 11, H_BYTES)
    stamp(a, 0, 1, 10, vT, vT + 2, sT)
    def dma(s):
        a("s_add_u32 m0, s%d, %d", sM0, s * 1024)
        a("s_mov_b32 s%d, %d", sDO, s * 16384)
        a("buffer_load_dwordx4 v%d, s[%d:%d], s%d offen lds", vDO, sD, sD + 3, sDO)
    def hload(s):
        for mt in range(2):
            r = vH + (s * 2 + mt) * 4
            a("buffer_load_dwordx4 v[%d:%d], v%d, s[%d:%d], s%d offen offset:%d", r, r + 3, vHO + mt, sH, sH + 3,
              sK4 + (s >> 2), (s & 3) * 1024)
    seq = [("d", 0)]
    for s in range(NS):
        if s + 1 < NS:
            seq.append(("d", s + 1))
        seq.append(("h", s))
    pos = {}
    cnt = 0
    for e in seq:
        cnt += 1 if e[0] == "d" else 2
        pos[e] = cnt
    total = cnt
    PRE = 20
    st = {"i": 0, "cnt": 0}
    def issue_until(e):
        while st["i"] < len(seq):
            x = seq[st["i"]]
            if x[0] == "d": dma(x[1])
            else: hload(x[1])
            st["i"] += 1
            st["cnt"] = pos[x]
            if x == e:
                break
    issue_until(("h", PRE - 1))
    srd(a, sO, 6, 7, OUT_BYTES)
    a("v_bfe_u32 v%d, v%d, 2, 2", vT, vL)
    a("v_lshrrev_b32 v%d, 5, v%d", vT + 1, vL)
    a("v_lshl_add_u32 v%d, v%d, 3, v%d", vT, vT + 1, vT)
    a("v_lshlrev_b32 v%d, 6, v%d", vT, vT)
    a("v_bfe_u32 v%d, v%d, 4, 1", vT + 2, vL)
    a("v_lshl_add_u32 v%d, v%d, 5, v%d", vT, vT + 2, vT)
    a("v_and_b32 v%d, 3, v%d", vT + 2, vL)
    a("v_lshl_add_u32 v%d, v%d, 3, v%d", vT, vT + 2, vT)
    a("v_add_u32 v%d, s%d, v%d", vAA, sM0, vT)
    def aread(s):
        f = vFA + 4 * (s & 1)
        a("ds_read_b64_tr_b16 v[%d:%d], v%d offset:%d", f, f + 1, vAA, s * 1024)
        a("ds_read_b64_tr_b16 v[%d:%d], v%d offset:%d", f + 2, f + 3, vAA, s * 1024 + 256)
    sx = 1 if STAMP else 0
    a("s_waitcnt vmcnt(%d)", min(63, st["cnt"] - pos[("d", 0)]))
    aread(0)
    for s in range(NS):
        if s + PRE < NS:
            issue_until(("h", s + PRE))
        a("s_waitcnt vmcnt(%d)", st["cnt"] - pos[("h", s)])
        if s == 0:
            pass
        if s + 1 < NS:
            aread(s + 1)
            a("s_waitcnt lgkmcnt(2)")
        else:
            a("s_waitcnt lgkmcnt(0)")
        f = vFA + 4 * (s & 1)
        for mt in range(2):
            r = vH + (s * 2 + mt) * 4
            cs = "0" if s == 0 else "a[%d:%d]" % (16 * mt, 16 * mt + 15)
            a("v_mfma_f32_32x32x16_bf16 a[%d:%d], v[%d:%d], v[%d:%d], %s", 16 * mt, 16 * mt + 15, f, f + 3, r, r + 3, cs)
    stamp(a, 2, 1, 10, vT, vT + 2, sT)
    RB = 112 * 1024
    a("v_and_b32 v%d, 31, v%d", vT, vL)
    a("v_lshlrev_b32 v%d, 7, v%d", vT, vT)
    a("s_lshl_b32 s%d, s%d, 13", sT, sW)
    a("s_add_u32 s%d, s%d, %d", sT, sT, RB)
    a("v_add_u32 v%d, s%d, v%d", vT, sT, vT)
    a("v_lshrrev_b32 v%d, 5, v%d", vT + 1, vL)
    a("v_and_b32 v%d, 7, v%d", vT + 2, vL)
    a("v_xor_b32 v%d, v%d, v%d", vT + 2, vT + 2, vT + 1)
    for G in range(4):
        a("v_xor_b32 v%d, %d, v%d", vT + 3, 2 * G, vT + 2)
        a("v_lshl_add_u32 v%d, v%d, 4, v%d", vRA + G, vT + 3, vT)
    a("s_nop 7")
    for mt in range(2):
        for G in range(4):
            a("ds_write_b128 v%d, a[%d:%d] offset:%d", vRA + G, 16 * mt + 4 * G, 16 * mt + 4 * G + 3, mt * 4096)
    a("v_lshrrev_b32 v%d, 2, v%d", vT, vL)
    a("v_and_b32 v%d, 7, v%d", vT + 1, vT)
    a("v_and_b32 v%d, 3, v%d", vT + 2, vL)
    a("v_lshlrev_b32 v%d, 1, v%d", vT + 2, vT + 2)
    a("v_xor_b32 v%d, v%d, v%d", vT + 1, vT + 1, vT + 2)
    a("v_lshlrev_b32 v%d, 4, v%d", vT + 1, vT + 1)
    a("v_lshl_add_u32 v%d, v%d, 7, v%d", vT + 1, vT, vT + 1)
    a("s_lshl_b32 s%d, s%d, 11", sT, sW)
    a("s_add_u32 s%d, s%d, %d", sT, sT, RB)
    a("v_add_u32 v%d, s%d, v%d", vT + 1, sT, vT + 1)
    a("v_xor_b32 v%d, 16, v%d", vT + 3, vT + 1)
    a("v_lshlrev_b32 v%d, 3, v%d", vT + 2, vT + 2)
    a("v_lshl_add_u32 v%d, v%d, 10, v%d", vT + 4, vT, vT + 2)
    a("s_lshl_b32 s%d, s%d, 16", sT, sMB)
    a("s_lshl_b32 s%d, s%d, 14", sT + 1, sW)
    a("s_add_u32 s%d, s%d, s%d", sT, sT, sT + 1)
    a("s_lshl_b32 s%d, s%d, 6", sT + 1, sNB)
    a("s_add_u32 s%d, s%d, s%d", sT, sT, sT + 1)
    a("v_add_u32 v%d, s%d, v%d", vT + 4, sT, vT + 4)
    a("s_waitcnt lgkmcnt(0)")
    a("s_barrier")
    R = vH
    for p in range(4):
        a("ds_read_b128 v[%d:%d], v%d offset:%d", R + 8 * p, R + 8 * p + 3, vT + 1, p * 8192)
        a("ds_read_b128 v[%d:%d], v%d offset:%d", R + 8 * p + 4, R + 8 * p + 7, vT + 3, p * 8192)
    a("s_waitcnt lgkmcnt(4)")
    for j in range(0, 8, 2):
        a("v_pk_add_f32 v[%d:%d], v[%d:%d], v[%d:%d]", R + j, R + j + 1, R + j, R + j + 1, R + 8 + j, R + 9 + j)
    a("s_waitcnt lgkmcnt(0)")
    for j in range(0, 8, 2):
        a("v_pk_add_f32 v[%d:%d], v[%d:%d], v[%d:%d]", R + 16 + j, R + 17 + j, R + 16 + j, R + 17 + j, R + 24 + j, R + 25 + j)
    for j in range(0, 8, 2):
        a("v_pk_add_f32 v[%d:%d], v[%d:%d], v[%d:%d]", R + j, R + j + 1, R + j, R + j + 1, R + 16 + j, R + 17 + j)
    for j in range(4):
        a("v_cvt_pk_bf16_f32 v%d, v%d, v%d", R + 8 + j, R + 2 * j, R + 2 * j + 1)
    a("buffer_store_dwordx4 v[%d:%d], v%d, s[%d:%d], 0 offen", R + 8, R + 11, vT + 4, sO, sO + 3)
    if STAMP:
        a("s_waitcnt vmcnt(0)")
    stamp(a, 3, 1, 10, vT, vT + 2, sT)
    a.label("L_k2_end")
    a("s_endpgm")
    return a.text(), 288, 56, 256

def main():
    out = sys.argv[1]
    k1, v1, s1, a1 = gen_k1()
    k2, v2, s2, a2 = gen_k2()
    t = HEADER
    t += "; @launch kernel=ffn_up_kernel grid=(224,1,1) block=(256,1,1) lds=163840\n"
    t += "; @launch kernel=ffn_down_kernel grid=(256,1,1) block=(256,1,1) lds=147456\n"
    t += '.amdgcn_target "amdgcn-amd-amdhsa--gfx950"\n.text\n'
    t += kernel_head("ffn_up_kernel") + k1
    t += kernel_head("ffn_down_kernel") + k2
    t += '.section .rodata,"a"\n.p2align 6\n'
    t += kernel_desc("ffn_up_kernel", v1, s1, a1)
    t += ".p2align 6\n"
    t += kernel_desc("ffn_down_kernel", v2, s2, a2)
    open(out, "w").write(t)
main()
```

```python
import sys
from asmlib import *

STAMP = False
OPT = {"rot": 1, "xnt": 0, "wnt": 1, "dnt": 0, "la": 2, "flag": "byte", "sleep": 1, "cpf": 1, "cyc": 0}
for arg in sys.argv[2:]:
    if arg == "stamp":
        STAMP = True
    elif "=" in arg:
        k, v = arg.split("=")
        OPT[k] = int(v) if v.lstrip("-").isdigit() else v
XNT = " nt" if OPT["xnt"] else ""
WNT = " nt" if OPT["wnt"] else ""
DNT = " nt" if OPT["dnt"] else ""

X_BYTES = 1024 * 512 * 2
W_BYTES = 512 * 1792 * 2
H_BYTES = 1024 * 1792 * 2
OUT_BYTES = 1024 * 512 * 2
STAMP_OFF = 8 << 20
SLOT = 32768
E_BASE = 4 * SLOT
MISC = E_BASE + 24576
NST = 8

a = Asm()
sX, sG, sU, sH, sD, sO = 12, 16, 20, 24, 28, 32
sDBG = 36
sWS = 24
sW = 38
sJ = 39
sMB, sFB, sROT = 40, 41, 42
sMT, sNB = 43, 44
sM0X, sM0G = 45, 46
sXO, sWO = 47, 48
sT = 50
sC = 58
sKH = 60
sPJ = 74
sPE = 75
sCNT = 76
sFO = 77
NAME = "standalone__swiglu_ffn__sampling_kernel"
SST = 78
NSTAMP = 12
vL = 1
vT = 2
vXO, vGO, vUO = 10, 14, 16
vDO = 18
vBA = 10
vAA = 18
vHO = 22
vTA = 24
vHL = 30
vPW = 232
vPR = 240
vOO = 243
vWA = 32
vHB = 144
vA2 = 200
vFR = 32
vAC = 96
vE = 160

def stamp(idx):
    if STAMP:
        a("%s s[%d:%d]", "s_memtime" if OPT["cyc"] else "s_memrealtime", SST + 2 * idx, SST + 2 * idx + 1)

def srd(d, lo, hi, nbytes):
    a("s_mov_b32 s%d, s%d", d, lo)
    a("s_and_b32 s%d, s%d, 0xffff", d + 1, hi)
    a("s_mov_b32 s%d, 0x%x", d + 2, nbytes)
    a("s_mov_b32 s%d, 0x20000", d + 3)

FLAG_OFF = 4 << 20
a("s_cmp_ge_u32 s2, 256")
a("s_cbranch_scc1 L_end")
a("s_load_dwordx2 s[%d:%d], s[0:1], 8", sG, sG + 1)
a("s_load_dwordx2 s[%d:%d], s[0:1], 16", sU, sU + 1)
a("s_load_dwordx2 s[%d:%d], s[0:1], 0", sX, sX + 1)
a("s_load_dwordx2 s[%d:%d], s[0:1], 24", sD, sD + 1)
a("s_load_dwordx2 s[%d:%d], s[0:1], 32", sO, sO + 1)
a("s_load_dwordx2 s[%d:%d], s[0:1], 40", sDBG, sDBG + 1)
a("s_load_dwordx2 s[%d:%d], s[0:1], 48", sH, sH + 1)
if STAMP:
    for i in range(NSTAMP):
        a("s_mov_b64 s[%d:%d], 0", SST + 2 * i, SST + 2 * i + 1)
stamp(0)
a("v_lshrrev_b32 v%d, 6, v0", vT)
a("v_and_b32 v%d, 63, v0", vL)
a("v_readfirstlane_b32 s%d, v%d", sW, vT)
a("v_lshrrev_b32 v%d, 3, v%d", vT, vL)
a("v_lshrrev_b32 v%d, 4, v%d", vT + 1, vL)
a("v_and_b32 v%d, 7, v%d", vT + 2, vL)
for d, nb in ((sX, X_BYTES), (sG, W_BYTES), (sU, W_BYTES), (sD, W_BYTES), (sH, 5 << 20), (sO, OUT_BYTES)):
    a("s_mov_b32 s%d, 0x%x", d + 2, nb)
    a("s_mov_b32 s%d, 0x20000", d + 3)
a("s_and_b32 s%d, s2, 1", sT)
a("s_lshl_b32 s%d, s%d, 2", sT, sT)
a("s_bfe_u32 s%d, s2, 0x20003", sT + 1)
a("s_add_u32 s%d, s%d, s%d", sMB, sT, sT + 1)
a("s_bfe_u32 s%d, s2, 0x20001", sT)
a("s_mul_i32 s%d, s%d, 7", sT, sT)
a("s_lshr_b32 s%d, s2, 5", sT + 2)
a("s_add_u32 s%d, s%d, s%d", sFB, sT, sT + 2)
if OPT["rot"]:
    a("s_lshl_b32 s%d, s%d, 1", sT + 1, sT + 1)
    a("s_add_u32 s%d, s%d, s%d", sROT, sT + 1, sT + 2)
else:
    a("s_mov_b32 s%d, 0", sROT)
a("s_and_b32 s%d, s%d, 3", sJ, sW)
a("s_cmp_lt_u32 s%d, 4", sW)
a("s_cbranch_scc1 L_compute")

def ids2():
    a("s_lshl_b32 s%d, s%d, 13", sPJ, sJ)
    a("s_mul_i32 s%d, s%d, 6144", sPE, sJ)
    a("s_add_u32 s%d, s%d, %d", sPE, sPE, E_BASE)
    a("s_bfe_u32 s%d, s2, 0x30003", sNB)
    a("s_lshr_b32 s%d, s2, 6", sT)
    a("s_and_b32 s%d, s2, 7", sT + 1)
    a("s_lshl_b32 s%d, s%d, 2", sT + 1, sT + 1)
    a("s_add_u32 s%d, s%d, s%d", sMT, sT + 1, sT)

def rot2_table():
    ids2()
    a("s_mul_i32 s%d, s%d, 7", sT, sNB)
    a("s_lshr_b32 s%d, s%d, 2", sT, sT)
    a("s_and_b32 s%d, s%d, 3", sT + 1, sMT)
    a("s_lshl_b32 s%d, s%d, 2", sT + 1, sT + 1)
    a("s_add_u32 s%d, s%d, s%d", sT, sT, sT + 1)
    if not OPT["rot"]:
        a("s_mov_b32 s%d, 0", sT)
    a("s_cmp_ge_u32 s%d, 14", sT)
    a("s_cselect_b32 s%d, 14, 0", sT + 1)
    a("s_sub_u32 s%d, s%d, s%d", sT, sT, sT + 1)
    for i in range(14):
        a("s_lshl_b32 s%d, s%d, 10", sKH + i, sT)
        if i < 13:
            a("s_add_u32 s%d, s%d, 1", sT, sT)
            a("s_cmp_eq_u32 s%d, 14", sT)
            a("s_cselect_b32 s%d, 0, s%d", sT, sT)

def p2_addr_setup(role):
    a("v_lshrrev_b32 v%d, 5, v%d", vT, vL)
    a("v_bfe_u32 v%d, v%d, 2, 2", vT + 1, vL)
    a("v_lshlrev_b32 v%d, 7, v%d", vT + 1, vT + 1)
    a("v_lshl_add_u32 v%d, v%d, 10, v%d", vT + 1, vT, vT + 1)
    a("v_and_b32 v%d, 1, v%d", vT + 2, vL)
    a("v_lshl_add_u32 v%d, v%d, 3, v%d", vT + 1, vT + 2, vT + 1)
    a("v_bfe_u32 v%d, v%d, 1, 1", vT + 2, vL)
    a("v_lshl_add_u32 v%d, v%d, 4, v%d", vT + 1, vT + 2, vT + 1)
    a("v_bfe_u32 v%d, v%d, 4, 1", vT + 2, vL)
    a("v_lshl_add_u32 v%d, v%d, 5, v%d", vT + 1, vT + 2, vT + 1)
    a("v_bfe_u32 v%d, v%d, 3, 1", vT + 2, vL)
    a("v_lshl_add_u32 v%d, v%d, 6, v%d", vT + 1, vT + 2, vT + 1)
    a("v_add_u32 v%d, s%d, v%d", vTA, sPJ, vT + 1)
    a("v_xor_b32 v%d, 64, v%d", vTA + 1, vTA)
    a("v_add_u32 v%d, 0x10000, v%d", vTA + 2, vTA)
    a("v_add_u32 v%d, 0x10000, v%d", vTA + 3, vTA + 1)
    a("v_add_u32 v%d, s%d, v%d", vTA + 4, sPE, vT + 1)
    a("v_xor_b32 v%d, 64, v%d", vTA + 5, vTA + 4)
    a("s_mul_i32 s%d, s%d, 112", sT, sMT)
    a("s_mul_i32 s%d, s%d, 14", sT + 1, sW)
    a("s_add_u32 s%d, s%d, s%d", sT, sT, sT + 1)
    a("s_lshl_b32 s%d, s%d, 10", sT, sT)
    a("v_lshlrev_b32 v%d, 4, v%d", vHL, vL)
    a("v_add_u32 v%d, s%d, v%d", vHL, sT, vHL)
    a("v_and_b32 v%d, 31, v%d", vT + 1, vL)
    a("v_lshlrev_b32 v%d, 7, v%d", vT + 1, vT + 1)
    a("v_add_u32 v%d, s%d, v%d", vT + 1, sPJ, vT + 1)
    a("v_and_b32 v%d, 7, v%d", vT + 2, vL)
    a("v_xor_b32 v%d, v%d, v%d", vT + 2, vT + 2, vT)
    r0, r1 = (3 * SLOT, 3 * SLOT + 4096) if role == "c" else (2 * SLOT, SLOT + 4096)
    for G in range(4):
        a("v_xor_b32 v%d, %d, v%d", vT + 3, 2 * G, vT + 2)
        a("v_lshl_add_u32 v%d, v%d, 4, v%d", vT + 3, vT + 3, vT + 1)
        a("v_add_u32 v%d, 0x%x, v%d", vPW + G, r0, vT + 3)
        a("v_add_u32 v%d, 0x%x, v%d", vPW + 4 + G, r1, vT + 3)
    a("v_lshrrev_b32 v%d, 4, v0", vT)
    a("v_and_b32 v%d, 7, v%d", vT + 1, vT)
    a("v_and_b32 v%d, 7, v0", vT + 2)
    a("v_xor_b32 v%d, v%d, v%d", vT + 1, vT + 1, vT + 2)
    a("v_lshlrev_b32 v%d, 4, v%d", vT + 1, vT + 1)
    a("v_lshl_add_u32 v%d, v%d, 7, v%d", vT + 1, vT, vT + 1)
    a("v_bfe_u32 v%d, v0, 3, 1", vT + 2)
    a("v_lshlrev_b32 v%d, 12, v%d", vT + 3, vT + 2)
    a("v_add3_u32 v%d, v%d, v%d, s%d", vPR, vT + 1, vT + 3, sT + 4) if False else None
    a("v_add_u32 v%d, v%d, v%d", vPR, vT + 1, vT + 3)
    a("v_add_u32 v%d, 0x%x, v%d", vPR, 3 * SLOT, vPR)
    a("v_mul_u32_u24 v%d, 0x%x, v%d", vT + 3, SLOT - 4096, vT + 2)
    a("v_sub_u32 v%d, v%d, v%d", vPR + 1, vT + 1, vT + 3)
    a("v_add_u32 v%d, 0x%x, v%d", vPR + 1, 2 * SLOT, vPR + 1)
    a("v_and_b32 v%d, 15, v0", vT + 2)
    a("v_lshlrev_b32 v%d, 3, v%d", vT + 2, vT + 2)
    a("v_lshl_add_u32 v%d, v%d, 10, v%d", vOO, vT, vT + 2)
    a("s_lshl_b32 s%d, s%d, 15", sT, sMT)
    a("s_lshl_b32 s%d, s%d, 7", sT + 1, sNB)
    a("s_add_u32 s%d, s%d, s%d", sT, sT, sT + 1)
    a("v_add_u32 v%d, s%d, v%d", vOO, sT, vOO)

def place_own(i):
    if i < 3: return (2, i * 2048)
    if i < 7: return (0, (i - 3) * 2048)
    if i < 11: return (0, SLOT + (i - 7) * 2048)
    return (1, (i - 11) * 2048)
def place_comp(i):
    if i < 1: return (1, 6144)
    if i < 5: return (1, SLOT + (i - 1) * 2048)
    if i < 8: return (2, (i - 5) * 2048)
    if i < 12: return (0, (i - 8) * 2048)
    return (0, SLOT + (i - 12) * 2048)
def tr_reads(i, place):
    g, off = place(i)
    for t in range(2):
        r = vWA + 8 * i + 4 * t
        a("ds_read_b64_tr_b16 v[%d:%d], v%d offset:%d", r, r + 1, vTA + 2 * g + t, off)
        a("ds_read_b64_tr_b16 v[%d:%d], v%d offset:%d", r + 2, r + 3, vTA + 2 * g + t, off + 512)

a("v_xor_b32 v%d, v%d, v%d", vT + 3, vT + 2, vT + 1)
a("v_lshlrev_b32 v%d, 4, v%d", vT + 3, vT + 3)
a("v_lshl_add_u32 v%d, v%d, 10, v%d", vT + 3, vT, vT + 3)
a("s_lshl_b32 s%d, s%d, 17", sT, sMB)
a("s_lshl_b32 s%d, s%d, 15", sT + 1, sJ)
a("s_add_u32 s%d, s%d, s%d", sT, sT, sT + 1)
a("v_add_u32 v%d, s%d, v%d", vXO, sT, vT + 3)
a("v_xor_b32 v%d, 64, v%d", vXO + 1, vXO)
a("v_add_u32 v%d, 0x2000, v%d", vXO + 1, vXO + 1)
a("v_add_u32 v%d, 0x4000, v%d", vXO + 2, vXO)
a("v_add_u32 v%d, 0x4000, v%d", vXO + 3, vXO + 1)
a("v_and_b32 v%d, 2, v%d", vT + 3, vT)
a("v_xor_b32 v%d, v%d, v%d", vT + 3, vT + 3, vT + 2)
a("v_lshlrev_b32 v%d, 4, v%d", vT + 3, vT + 3)
a("v_mul_u32_u24 v%d, 3584, v%d", vT + 4, vT)
a("v_add_u32 v%d, v%d, v%d", vT + 3, vT + 3, vT + 4)
a("s_mul_i32 s%d, s%d, %d", sT, sJ, 16 * 3584)
a("s_lshl_b32 s%d, s%d, 7", sT + 1, sFB)
a("s_add_u32 s%d, s%d, s%d", sT, sT, sT + 1)
a("v_add_u32 v%d, s%d, v%d", vGO, sT, vT + 3)
a("v_add_u32 v%d, %d, v%d", vGO + 1, 8 * 3584, vGO)
a("v_xor_b32 v%d, 64, v%d", vUO, vGO)
a("v_xor_b32 v%d, 64, v%d", vUO + 1, vGO + 1)
a("s_lshl_b32 s%d, s%d, 12", sM0X, sJ)
a("s_lshl_b32 s%d, s%d, 11", sM0G, sJ)
a("s_add_u32 s%d, s%d, 16384", sM0G, sM0G)

def dma_stage(st):
    slot = (st % 4) * SLOT
    a("s_add_u32 s%d, s%d, %d", sWO, sROT, st)
    a("s_and_b32 s%d, s%d, 7", sWO, sWO)
    a("s_lshl_b32 s%d, s%d, 7", sXO, sWO)
    a("s_mul_i32 s%d, s%d, %d", sWO, sWO, 64 * 3584)
    seq = []
    for j in range(2):
        seq.append((sM0G, slot + j * 1024, vGO + j, sG, sWO, WNT))
        seq.append((sM0G, slot + 8192 + j * 1024, vUO + j, sU, sWO, WNT))
    for i in range(4):
        seq.append((sM0X, slot + i * 1024, vXO + i, sX, sXO, XNT))
    for base, off, vo, s, so, nt in seq:
        a("s_add_u32 m0, s%d, %d", base, off)
        a("s_nop 0")
        a("buffer_load_dwordx4 v%d, s[%d:%d], s%d offen%s lds", vo, s, s + 3, so, nt)

def wd_setup():
    a("v_lshrrev_b32 v%d, 3, v%d", vT, vL)
    a("v_and_b32 v%d, 7, v%d", vT + 2, vL)
    a("v_bfe_u32 v%d, v%d, 4, 1", vT + 3, vL)
    a("v_lshlrev_b32 v%d, 2, v%d", vT + 3, vT + 3)
    a("v_xor_b32 v%d, v%d, v%d", vT + 3, vT + 3, vT + 2)
    a("v_lshlrev_b32 v%d, 4, v%d", vT + 3, vT + 3)
    a("v_lshl_add_u32 v%d, v%d, 10, v%d", vT + 3, vT, vT + 3)
    a("s_mul_i32 s%d, s%d, %d", sT, sJ, 224 * 1024)
    a("s_lshl_b32 s%d, s%d, 7", sT + 1, sNB)
    a("s_add_u32 s%d, s%d, s%d", sT, sT, sT + 1)
    a("v_add_u32 v%d, s%d, v%d", vDO + 2, sT, vT + 3)
    a("v_add_u32 v%d, 0x2000, v%d", vDO + 3, vDO + 2)
    a("v_add_u32 v%d, 0x%x, v%d", vDO, 4 * 224 * 1024, vDO + 2)
    a("v_add_u32 v%d, 0x2000, v%d", vDO + 1, vDO)

def wd_dma(i, own):
    g, off = (place_own if own else place_comp)(i)
    base = sPE if g == 2 else sPJ
    off += 0x10000 if g == 1 else 0
    a("s_lshl_b32 s%d, s%d, 4", sT, sKH + i)
    for b in range(2):
        a("s_add_u32 m0, s%d, %d", base, off + b * 1024)
        a("s_nop 0")
        a("buffer_load_dwordx4 v%d, s[%d:%d], s%d offen%s lds", vDO + (0 if own else 2) + b, sD, sD + 3, sT, DNT)

a("s_waitcnt lgkmcnt(0)")
a("s_cmp_ge_u32 s2, 224")
a("s_cbranch_scc1 L_l_idle")
LA = OPT["la"]
for st in range(LA):
    dma_stage(st)
stamp(1)
rot2_table()
wd_setup()
issued = LA
extra = 0
for st in range(NST):
    a("s_waitcnt vmcnt(%d)", (issued - st - 1) * 8 + extra)
    a("s_barrier")
    if st in (0, 1, 4, 7):
        stamp({0: 2, 1: 3, 4: 4, 7: 5}[st])
    if issued < NST:
        dma_stage(issued)
        issued += 1
    elif st == NST - 2 or (st == NST - 3 and LA == 3):
        if extra == 0:
            for i in range(3):
                wd_dma(i, True)
            extra = 6
        else:
            for i in range(3, 7):
                wd_dma(i, True)
            extra += 8
done_own = 3 if extra == 6 else 7
a("s_branch L_l_wd%d", done_own)
a.label("L_l_idle")
rot2_table()
wd_setup()
for i in range(done_own):
    wd_dma(i, True)
a.label("L_l_wd%d" % done_own)
for i in range(done_own, 14):
    wd_dma(i, True)
wd_dma(0, False)
p2_addr_setup("l")
a("s_waitcnt vmcnt(%d)", 22 + 2)
for i in range(3):
    tr_reads(i, place_own)
a("s_waitcnt lgkmcnt(0)")
for i in range(5, 8):
    wd_dma(i, False)
a("s_waitcnt vmcnt(%d)", 14 + 2 + 6)
for i in range(3, 7):
    tr_reads(i, place_own)
    if i == 4:
        a("s_waitcnt lgkmcnt(4)")
a("s_waitcnt lgkmcnt(0)")
for i in range(8, 12):
    wd_dma(i, False)
a("s_cmp_ge_u32 s2, 224")
a("s_cbranch_scc1 L_l_s3ok")
a("v_mov_b32 v%d, %d", vT + 6, MISC)
a("s_mov_b32 s%d, 0", sCNT)
a.label("L_l_s3wait")
a("ds_read_b32 v%d, v%d offset:4", vT, vT + 6)
a("s_add_u32 s%d, s%d, 1", sCNT, sCNT)
a("s_waitcnt lgkmcnt(0)")
a("v_readfirstlane_b32 s%d, v%d", sT + 1, vT)
a("s_cmp_lt_u32 s%d, 0x400000", sCNT)
a("s_cbranch_scc0 L_l_s3ok")
a("s_cmp_lt_u32 s%d, 256", sT + 1)
a("s_cbranch_scc1 L_l_s3wait")
a.label("L_l_s3ok")
for i in range(1, 5):
    wd_dma(i, False)
a("s_waitcnt vmcnt(%d)", 6 + 2 + 6 + 8 + 8)
for i in range(7, 11):
    tr_reads(i, place_own)
    if i == 8:
        a("s_waitcnt lgkmcnt(4)")
a("s_waitcnt lgkmcnt(0)")
for i in range(12, 14):
    wd_dma(i, False)
a("s_waitcnt vmcnt(%d)", 2 + 6 + 8 + 8 + 4)
for i in range(11, 14):
    tr_reads(i, place_own)
stamp(6)
a("s_waitcnt vmcnt(0) lgkmcnt(0)")
stamp(7)
a("s_cmp_eq_u32 s%d, 4", sW)
a("s_cbranch_scc0 L_l_join")
a("s_lshr_b32 s%d, s%d, 2", sT, sMT)
a("s_lshl_b32 s%d, s%d, 5", sT + 1, sT)
a("v_mov_b32 v%d, s%d", vT + 2, sT + 1)
a("s_lshl_b32 s%d, s%d, 12", sT, sT)
a("s_add_u32 s%d, s%d, 0x%x", sT, sT, FLAG_OFF)
a("v_lshlrev_b32 v%d, 7, v%d", vT + 1, vL)
a("s_mov_b32 s%d, 0", sCNT)
a("s_mov_b64 exec, 1")
a.label("L_poll0")
a("global_load_dword v%d, v%d, s[%d:%d] sc1", vT, vT + 2, sDBG, sDBG + 1)
a("s_add_u32 s%d, s%d, 1", sCNT, sCNT)
a("s_waitcnt vmcnt(0)")
a("v_cmp_ne_u32 vcc, 28, v%d", vT)
a("s_cmp_lt_u32 s%d, 0x40000", sCNT)
a("s_cbranch_scc0 L_poll0_done")
a("s_cmp_eq_u64 vcc, 0")
a("s_cbranch_scc1 L_poll0_done")
a("s_sleep 8")
a("s_branch L_poll0")
a.label("L_poll0_done")
a("s_mov_b64 exec, 0xfffffff")
a.label("L_poll")
a("buffer_load_dword v%d, v%d, s[%d:%d], s%d offen sc1", vT, vT + 1, sH, sH + 3, sT)
a("s_add_u32 s%d, s%d, 1", sCNT, sCNT)
a("s_waitcnt vmcnt(0)")
a("v_cmp_ne_u32 vcc, 1, v%d", vT)
a("s_cmp_lt_u32 s%d, 0x40000", sCNT)
a("s_cbranch_scc0 L_poll_done")
a("s_cmp_eq_u64 vcc, 0")
a("s_cbranch_scc1 L_poll_done")
if OPT["sleep"]:
    a("s_sleep %d", OPT["sleep"])
a("s_branch L_poll")
a.label("L_poll_done")
a("s_mov_b64 exec, -1")
a.label("L_l_join")
stamp(8)
a("s_barrier")
stamp(9)
for i in range(14):
    r = vHB + 4 * i
    a("buffer_load_dwordx4 v[%d:%d], v%d, s[%d:%d], s%d offen sc1", r, r + 3, vHL, sH, sH + 3, sKH + i)

a("s_branch L_p2")

a.label("L_compute")
a("s_waitcnt lgkmcnt(0)")
a("s_cmp_ge_u32 s2, 224")
a("s_cbranch_scc1 L_c_p2")
a("s_lshl_b32 s%d, s%d, 12", sT, sMB)
a("s_lshl_b32 s%d, s%d, 7", sT + 1, sFB)
a("s_add_u32 s%d, s%d, s%d", sFO, sT, sT + 1)
a("s_add_u32 s%d, s%d, 0x%x", sFO, sFO, FLAG_OFF)
a("s_cmp_lg_u32 s%d, 0", sW)
a("s_cbranch_scc1 L_c_noclear")
a("s_mov_b64 exec, 1")
a("v_mov_b32 v%d, 0", vT + 3)
a("v_mov_b32 v%d, 1", vT + 4)
a("s_lshl_b32 s%d, s%d, 5", sT, sMB)
a("v_mov_b32 v%d, s%d", vT + 5, sT)
a("buffer_store_dword v%d, off, s[%d:%d], s%d sc1", vT + 3, sH, sH + 3, sFO)
a("s_waitcnt vmcnt(0)")
a("global_atomic_add v%d, v%d, s[%d:%d] sc1", vT + 5, vT + 4, sDBG, sDBG + 1)
a("s_mov_b64 exec, -1")
a.label("L_c_noclear")
a("v_mov_b32 v%d, %d", vT + 3, MISC)
a("v_mov_b32 v%d, 0", vT + 4)
a("v_mov_b32 v%d, 0", vT + 5)
a("ds_write_b64 v%d, v[%d:%d]", vT + 3, vT + 4, vT + 5)
a("s_and_b32 s%d, s%d, 1", sT, sW)
a("s_lshr_b32 s%d, s%d, 1", sT + 1, sW)
a("v_and_b32 v%d, 31, v%d", vT, vL)
a("v_lshlrev_b32 v%d, 7, v%d", vT, vT)
a("s_lshl_b32 s%d, s%d, 13", sT + 2, sT)
a("v_add_u32 v%d, s%d, v%d", vT, sT + 2, vT)
a("v_lshrrev_b32 v%d, 5, v%d", vT + 1, vL)
a("v_bfe_u32 v%d, v%d, 1, 3", vT + 2, vL)
a("v_xor_b32 v%d, v%d, v%d", vT + 2, vT + 2, vT + 1)
for s in range(4):
    a("v_xor_b32 v%d, %d, v%d", vT + 3, 2 * s, vT + 2)
    a("v_lshl_add_u32 v%d, v%d, 4, v%d", vBA + s, vT + 3, vT)
    a("v_add_u32 v%d, 0x10000, v%d", vBA + 4 + s, vBA + s)
a("v_bfe_u32 v%d, v%d, 2, 2", vT, vL)
a("v_lshl_add_u32 v%d, v%d, 3, v%d", vT, vT + 1, vT)
a("v_lshlrev_b32 v%d, 7, v%d", vT, vT)
a("v_bfe_u32 v%d, v%d, 4, 1", vT + 2, vL)
a("v_lshl_add_u32 v%d, v%d, 13, v%d", vT, vT + 2, vT)
a("v_bfe_u32 v%d, v%d, 1, 1", vT + 3, vL)
a("v_lshl_add_u32 v%d, v%d, 3, v%d", vT, vT + 3, vT)
a("v_add_u32 v%d, 16384, v%d", vT, vT)
a("v_bfe_u32 v%d, v%d, 3, 1", vT + 3, vL)
a("v_lshlrev_b32 v%d, 1, v%d", vT + 3, vT + 3)
a("v_lshl_add_u32 v%d, v%d, 2, v%d", vT + 3, vT + 2, vT + 3)
a("v_and_b32 v%d, 1, v%d", vT + 4, vL)
a("s_lshl_b32 s%d, s%d, 2", sT + 2, sT + 1)
a("v_add_u32 v%d, s%d, v%d", vT + 4, sT + 2, vT + 4)
a("v_xor_b32 v%d, v%d, v%d", vT + 4, vT + 4, vT + 3)
a("v_lshl_add_u32 v%d, v%d, 4, v%d", vAA, vT + 4, vT)
a("v_xor_b32 v%d, 32, v%d", vAA + 1, vAA)
a("v_add_u32 v%d, 0x10000, v%d", vAA + 2, vAA)
a("v_add_u32 v%d, 0x10000, v%d", vAA + 3, vAA + 1)
a("s_lshl_b32 s%d, s%d, 1", sT + 2, sMB)
a("s_add_u32 s%d, s%d, s%d", sT + 2, sT + 2, sT)
a("s_mul_i32 s%d, s%d, 224", sT + 2, sT + 2)
a("s_lshl_b32 s%d, s%d, 1", sT + 3, sFB)
a("s_add_u32 s%d, s%d, s%d", sT + 3, sT + 3, sT + 1)
a("s_lshl_b32 s%d, s%d, 1", sT + 3, sT + 3)
a("s_add_u32 s%d, s%d, s%d", sT + 2, sT + 2, sT + 3)
a("s_lshl_b32 s%d, s%d, 10", sT + 2, sT + 2)
a("v_lshlrev_b32 v%d, 4, v%d", vHO, vL)
a("v_add_u32 v%d, s%d, v%d", vHO, sT + 2, vHO)
a("s_mov_b32 s%d, 0xbfb8aa3b", sC)
a("s_mov_b32 s%d, 0xbfb8aa3b", sC + 1)
rot2_table()
p2_addr_setup("c")

def frag_reads(st, s, fs):
    slot = st % 4
    grp = slot // 2
    so = (slot % 2) * SLOT
    f = vFR + 16 * fs
    g0 = ["ds_read_b64_tr_b16 v[%d:%d], v%d offset:%d" % (f, f + 1, vAA + 2 * grp, so + 2048 * s),
          "ds_read_b64_tr_b16 v[%d:%d], v%d offset:%d" % (f + 2, f + 3, vAA + 2 * grp, so + 2048 * s + 512),
          "ds_read_b128 v[%d:%d], v%d offset:%d" % (f + 8, f + 11, vBA + 4 * grp + s, so)]
    g1 = ["ds_read_b128 v[%d:%d], v%d offset:%d" % (f + 12, f + 15, vBA + 4 * grp + s, so + 4096),
          "ds_read_b64_tr_b16 v[%d:%d], v%d offset:%d" % (f + 4, f + 5, vAA + 2 * grp + 1, so + 2048 * s),
          "ds_read_b64_tr_b16 v[%d:%d], v%d offset:%d" % (f + 6, f + 7, vAA + 2 * grp + 1, so + 2048 * s + 512)]
    return g0, g1
def mfma(ft, mt, fs, first):
    f = vFR + 16 * fs
    c = vAC + 16 * (2 * ft + mt)
    cs = "0" if first else "v[%d:%d]" % (c, c + 15)
    a("v_mfma_f32_32x32x16_bf16 v[%d:%d], v[%d:%d], v[%d:%d], %s", c, c + 15, f + 4 * ft, f + 4 * ft + 3,
      f + 8 + 4 * mt, f + 8 + 4 * mt + 3, cs)

a("v_mov_b32 v%d, %d", vT + 6, MISC)
a("v_mov_b32 v%d, 1", vT + 7)
stamp(1)
a("s_waitcnt lgkmcnt(0)")
a("s_barrier")
stamp(2)
g0, g1 = frag_reads(0, 0, 0)
for r in g0 + g1:
    a(r)
n = 0
for st in range(NST):
    for s in range(4):
        fs = n & 1
        last = (st == NST - 1 and s == 3)
        a("s_waitcnt lgkmcnt(0)")
        if s == 3 and not last:
            a("s_barrier")
            if st in (0, 3, 6):
                stamp(3 + st // 3)
        if last:
            a("ds_add_u32 v%d, v%d offset:4", vT + 6, vT + 7)
        if not last:
            nst, ns = (st, s + 1) if s < 3 else (st + 1, 0)
            g0, g1 = frag_reads(nst, ns, fs ^ 1)
        else:
            g0, g1 = [], []
        first = (n == 0)
        mfma(0, 0, fs, first)
        for r in g0: a(r)
        mfma(0, 1, fs, first)
        for r in g1: a(r)
        mfma(1, 0, fs, first)
        mfma(1, 1, fs, first)
        n += 1
stamp(6)
a("s_mov_b32 s%d, %d", sT, 112 * 1024)
a("s_nop 7")
for ft in range(2):
    for mt in range(2):
        c = vAC + 16 * (2 * ft + mt)
        e = vE + 16 * ((2 * ft + mt) & 1)
        for j in range(8):
            a("v_mul_f32 v%d, s%d, v%d", e + j, sC, c + j)
        for j in range(8):
            a("v_exp_f32 v%d, v%d", e + j, e + j)
        for j in range(8):
            a("v_mul_f32 v%d, v%d, v%d", c + j, c + j, c + 8 + j)
        for j in range(8):
            a("v_add_f32 v%d, 1.0, v%d", e + j, e + j)
        for j in range(8):
            a("v_rcp_f32 v%d, v%d", e + j, e + j)
        a("s_nop 0")
        for j in range(8):
            a("v_mul_f32 v%d, v%d, v%d", c + j, c + j, e + j)
        for j in range(4):
            a("v_cvt_pk_bf16_f32 v%d, v%d, v%d", e + 8 + j, c + 2 * j, c + 2 * j + 1)
        a("buffer_store_dwordx4 v[%d:%d], v%d, s[%d:%d], %s offen offset:%d sc1", e + 8, e + 11, vHO, sH, sH + 3,
          "0" if mt == 0 else "s%d" % sT, ft * 1024)
stamp(7)
a("s_waitcnt vmcnt(0)")
stamp(8)
a("s_mov_b64 s[%d:%d], exec", sT + 2, sT + 3)
a("s_mov_b64 exec, 1")
a("ds_add_rtn_u32 v%d, v%d, v%d", vT, vT + 6, vT + 7)
a("s_waitcnt lgkmcnt(0)")
a("v_readfirstlane_b32 s%d, v%d", sT + 1, vT)
a("s_nop 3")
a("s_cmp_eq_u32 s%d, 3", sT + 1)
a("s_cbranch_scc0 L_c_noflag")
a("buffer_store_dword v%d, off, s[%d:%d], s%d sc1", vT + 7, sH, sH + 3, sFO)
a.label("L_c_noflag")
a("s_mov_b64 exec, s[%d:%d]", sT + 2, sT + 3)
a("s_branch L_c_join")
a.label("L_c_p2")
if OPT["cpf"]:
    a("s_getpc_b64 s[%d:%d]", sT, sT + 1)
    a.label("L_pc")
    a("s_sub_u32 s%d, s%d, L_pc-%s", sT, sT, NAME)
    a("s_subb_u32 s%d, s%d, 0", sT + 1, sT + 1)
    a("v_lshlrev_b32 v%d, 7, v0", vT + 3)
    a("s_mov_b32 s%d, L_end-%s", sT + 2, NAME)
    a("v_cmp_gt_u32 vcc, s%d, v%d", sT + 2, vT + 3)
    a("s_and_saveexec_b64 s[%d:%d], vcc", sT + 2, sT + 3)
    a("s_cbranch_execz L_nopf")
    a("global_load_dword v%d, v%d, s[%d:%d]", vT + 4, vT + 3, sT, sT + 1)
    a.label("L_nopf")
    a("s_mov_b64 exec, -1")
rot2_table()
p2_addr_setup("c")
a.label("L_c_join")
a("s_barrier")
stamp(9)
for i in range(14):
    r = vHB + 4 * i
    a("buffer_load_dwordx4 v[%d:%d], v%d, s[%d:%d], s%d offen sc1", r, r + 3, vHL, sH, sH + 3, sKH + i)
for i in range(14):
    tr_reads(i, place_comp)
    if i % 2 == 1:
        a("s_waitcnt lgkmcnt(4)")
a("s_waitcnt lgkmcnt(0)")

a.label("L_p2")
for i in range(14):
    a("s_waitcnt vmcnt(%d)", 13 - i)
    for t in range(2):
        c = vA2 + 16 * t
        cs = "0" if i == 0 else "v[%d:%d]" % (c, c + 15)
        a("v_mfma_f32_32x32x16_bf16 v[%d:%d], v[%d:%d], v[%d:%d], %s", c, c + 15, vWA + 8 * i + 4 * t, vWA + 8 * i + 4 * t + 3,
          vHB + 4 * i, vHB + 4 * i + 3, cs)
stamp(10)
a("s_nop 7")
a("s_nop 3")
for t in range(2):
    for G in range(4):
        r = vA2 + 16 * t + 4 * G
        a("ds_write_b128 v%d, v[%d:%d]", vPW + 4 * t + G, r, r + 3)
a("s_waitcnt lgkmcnt(0)")
a("s_barrier")
R = 32
for p in range(8):
    a("ds_read_b128 v[%d:%d], v%d offset:%d", R + 4 * p, R + 4 * p + 3, vPR + (p >> 2), (p & 3) * 8192)
for lvl, (w, pairs) in enumerate([(6, [(0, 1)]), (4, [(2, 3)]), (2, [(4, 5), (0, 2)]), (0, [(6, 7), (4, 6), (0, 4)])]):
    a("s_waitcnt lgkmcnt(%d)", w)
    for x, y in pairs:
        for j in range(4):
            a("v_add_f32 v%d, v%d, v%d", R + 4 * x + j, R + 4 * x + j, R + 4 * y + j)
a("v_cvt_pk_bf16_f32 v%d, v%d, v%d", R + 4, R, R + 1)
a("v_cvt_pk_bf16_f32 v%d, v%d, v%d", R + 5, R + 2, R + 3)
a("buffer_store_dwordx2 v[%d:%d], v%d, s[%d:%d], 0 offen", R + 4, R + 5, vOO, sO, sO + 3)
if STAMP:
    a("s_waitcnt vmcnt(0)")
    stamp(11)
    a("s_waitcnt lgkmcnt(0)")
    vt = 40
    a("v_mov_b32 v%d, 0", vt)
    a("v_mov_b32 v%d, 0", vt + 1)
    for i in range(NSTAMP):
        a("v_writelane_b32 v%d, s%d, %d", vt, SST + 2 * i, i)
        a("v_writelane_b32 v%d, s%d, %d", vt + 1, SST + 2 * i + 1, i)
    a("s_lshl_b32 s%d, s2, 7", sT)
    a("s_lshr_b32 s%d, s%d, 2", sT + 1, sW)
    a("s_lshl_b32 s%d, s%d, 16", sT + 1, sT + 1)
    a("s_add_u32 s%d, s%d, s%d", sT, sT, sT + 1)
    a("s_add_u32 s%d, s%d, 0x%x", sT, sT, STAMP_OFF)
    a("v_lshlrev_b32 v%d, 3, v%d", vt + 2, vL)
    a("v_add_u32 v%d, s%d, v%d", vt + 2, sT, vt + 2)
    a("s_cmp_lg_u32 s%d, 0", sJ)
    a("s_cbranch_scc1 L_end")
    a("s_mov_b64 exec, 0xffff")
    a("global_store_dwordx2 v%d, v[%d:%d], s[%d:%d]", vt + 2, vt, vt + 1, sWS, sWS + 1)
a.label("L_end")
a("s_endpgm")

NAME = "standalone__swiglu_ffn__sampling_kernel"
t = HEADER
t += "; @launch grid=(256,1,1) block=(512,1,1) lds=163840\n"
t += '.amdgcn_target "amdgcn-amd-amdhsa--gfx950"\n.text\n'
t += kernel_head(NAME) + a.text()
t += '.section .rodata,"a"\n.p2align 6\n'
t += kernel_desc(NAME, 256, 102, 256)
open(sys.argv[1], "w").write(t)
```

```python
import sys
from asmlib import *

STAMP = False
OPT = {"rot": 1, "xnt": 0, "wnt": 1, "dnt": 0, "la": 2, "flag": "byte", "sleep": 1, "cpf": 1, "cyc": 0}
for arg in sys.argv[2:]:
    if arg == "stamp":
        STAMP = True
    elif "=" in arg:
        k, v = arg.split("=")
        OPT[k] = int(v) if v.lstrip("-").isdigit() else v
XNT = " nt" if OPT["xnt"] else ""
WNT = " nt" if OPT["wnt"] else ""
DNT = " nt" if OPT["dnt"] else ""

X_BYTES = 1024 * 512 * 2
W_BYTES = 512 * 1792 * 2
H_BYTES = 1024 * 1792 * 2
OUT_BYTES = 1024 * 512 * 2
STAMP_OFF = 8 << 20
SLOT = 32768
E_BASE = 4 * SLOT
MISC = E_BASE + 24576
NST = 8

a = Asm()
sX, sG, sU, sH, sD, sO = 12, 16, 20, 24, 28, 32
sDBG = 36
sWS = 24
sW = 38
sJ = 39
sMB, sFB, sROT = 40, 41, 42
sMT, sNB = 43, 44
sM0X, sM0G = 45, 46
sXO, sWO = 47, 48
sT = 50
sC = 58
sKH = 60
sPJ = 74
sPE = 75
sCNT = 76
sFO = 77
NAME = "standalone__swiglu_ffn__sampling_kernel"
SST = 78
NSTAMP = 12
vL = 1
vT = 2
vXO, vGO, vUO = 10, 14, 16
vDO = 18
vBA = 10
vAA = 18
vHO = 22
vTA = 24
vHL = 30
vPW = 232
vPR = 240
vOO = 243
vWA = 32
vHB = 144
vA2 = 200
vFR = 32
vAC = 96
vE = 160

def stamp(idx):
    if STAMP:
        a("%s s[%d:%d]", "s_memtime" if OPT["cyc"] else "s_memrealtime", SST + 2 * idx, SST + 2 * idx + 1)

def srd(d, lo, hi, nbytes):
    a("s_mov_b32 s%d, s%d", d, lo)
    a("s_and_b32 s%d, s%d, 0xffff", d + 1, hi)
    a("s_mov_b32 s%d, 0x%x", d + 2, nbytes)
    a("s_mov_b32 s%d, 0x20000", d + 3)

FLAG_OFF = 4 << 20
a("s_cmp_ge_u32 s2, 256")
a("s_cbranch_scc1 L_end")
a("s_load_dwordx2 s[%d:%d], s[0:1], 8", sG, sG + 1)
a("s_load_dwordx2 s[%d:%d], s[0:1], 16", sU, sU + 1)
a("s_load_dwordx2 s[%d:%d], s[0:1], 0", sX, sX + 1)
a("s_load_dwordx2 s[%d:%d], s[0:1], 24", sD, sD + 1)
a("s_load_dwordx2 s[%d:%d], s[0:1], 32", sO, sO + 1)
a("s_load_dwordx2 s[%d:%d], s[0:1], 40", sDBG, sDBG + 1)
a("s_load_dwordx2 s[%d:%d], s[0:1], 48", sH, sH + 1)
if STAMP:
    for i in range(NSTAMP):
        a("s_mov_b64 s[%d:%d], 0", SST + 2 * i, SST + 2 * i + 1)
stamp(0)
a("v_lshrrev_b32 v%d, 6, v0", vT)
a("v_and_b32 v%d, 63, v0", vL)
a("v_readfirstlane_b32 s%d, v%d", sW, vT)
a("v_lshrrev_b32 v%d, 3, v%d", vT, vL)
a("v_lshrrev_b32 v%d, 4, v%d", vT + 1, vL)
a("v_and_b32 v%d, 7, v%d", vT + 2, vL)
for d, nb in ((sX, X_BYTES), (sG, W_BYTES), (sU, W_BYTES), (sD, W_BYTES), (sH, 5 << 20), (sO, OUT_BYTES)):
    a("s_mov_b32 s%d, 0x%x", d + 2, nb)
    a("s_mov_b32 s%d, 0x20000", d + 3)
a("s_and_b32 s%d, s2, 1", sT)
a("s_lshl_b32 s%d, s%d, 2", sT, sT)
a("s_bfe_u32 s%d, s2, 0x20003", sT + 1)
a("s_add_u32 s%d, s%d, s%d", sMB, sT, sT + 1)
a("s_bfe_u32 s%d, s2, 0x20001", sT)
a("s_mul_i32 s%d, s%d, 7", sT, sT)
a("s_lshr_b32 s%d, s2, 5", sT + 2)
a("s_add_u32 s%d, s%d, s%d", sFB, sT, sT + 2)
if OPT["rot"]:
    a("s_lshl_b32 s%d, s%d, 1", sT + 1, sT + 1)
    a("s_add_u32 s%d, s%d, s%d", sROT, sT + 1, sT + 2)
else:
    a("s_mov_b32 s%d, 0", sROT)
a("s_and_b32 s%d, s%d, 3", sJ, sW)
a("s_cmp_lt_u32 s%d, 4", sW)
a("s_cbranch_scc1 L_compute")

def ids2():
    a("s_lshl_b32 s%d, s%d, 13", sPJ, sJ)
    a("s_mul_i32 s%d, s%d, 6144", sPE, sJ)
    a("s_add_u32 s%d, s%d, %d", sPE, sPE, E_BASE)
    a("s_bfe_u32 s%d, s2, 0x30003", sNB)
    a("s_lshr_b32 s%d, s2, 6", sT)
    a("s_and_b32 s%d, s2, 7", sT + 1)
    a("s_lshl_b32 s%d, s%d, 2", sT + 1, sT + 1)
    a("s_add_u32 s%d, s%d, s%d", sMT, sT + 1, sT)

def rot2_table():
    ids2()
    a("s_mul_i32 s%d, s%d, 7", sT, sNB)
    a("s_lshr_b32 s%d, s%d, 2", sT, sT)
    a("s_and_b32 s%d, s%d, 3", sT + 1, sMT)
    a("s_lshl_b32 s%d, s%d, 2", sT + 1, sT + 1)
    a("s_add_u32 s%d, s%d, s%d", sT, sT, sT + 1)
    if not OPT["rot"]:
        a("s_mov_b32 s%d, 0", sT)
    a("s_cmp_ge_u32 s%d, 14", sT)
    a("s_cselect_b32 s%d, 14, 0", sT + 1)
    a("s_sub_u32 s%d, s%d, s%d", sT, sT, sT + 1)
    for i in range(14):
        a("s_lshl_b32 s%d, s%d, 10", sKH + i, sT)
        if i < 13:
            a("s_add_u32 s%d, s%d, 1", sT, sT)
            a("s_cmp_eq_u32 s%d, 14", sT)
            a("s_cselect_b32 s%d, 0, s%d", sT, sT)

def p2_addr_setup(role):
    a("v_lshrrev_b32 v%d, 5, v%d", vT, vL)
    a("v_bfe_u32 v%d, v%d, 2, 2", vT + 1, vL)
    a("v_lshlrev_b32 v%d, 7, v%d", vT + 1, vT + 1)
    a("v_lshl_add_u32 v%d, v%d, 10, v%d", vT + 1, vT, vT + 1)
    a("v_and_b32 v%d, 1, v%d", vT + 2, vL)
    a("v_lshl_add_u32 v%d, v%d, 3, v%d", vT + 1, vT + 2, vT + 1)
    a("v_bfe_u32 v%d, v%d, 1, 1", vT + 2, vL)
    a("v_lshl_add_u32 v%d, v%d, 4, v%d", vT + 1, vT + 2, vT + 1)
    a("v_bfe_u32 v%d, v%d, 4, 1", vT + 2, vL)
    a("v_lshl_add_u32 v%d, v%d, 5, v%d", vT + 1, vT + 2, vT + 1)
    a("v_bfe_u32 v%d, v%d, 3, 1", vT + 2, vL)
    a("v_lshl_add_u32 v%d, v%d, 6, v%d", vT + 1, vT + 2, vT + 1)
    a("v_add_u32 v%d, s%d, v%d", vTA, sPJ, vT + 1)
    a("v_xor_b32 v%d, 64, v%d", vTA + 1, vTA)
    a("v_add_u32 v%d, 0x10000, v%d", vTA + 2, vTA)
    a("v_add_u32 v%d, 0x10000, v%d", vTA + 3, vTA + 1)
    a("v_add_u32 v%d, s%d, v%d", vTA + 4, sPE, vT + 1)
    a("v_xor_b32 v%d, 64, v%d", vTA + 5, vTA + 4)
    a("s_mul_i32 s%d, s%d, 112", sT, sMT)
    a("s_mul_i32 s%d, s%d, 14", sT + 1, sW)
    a("s_add_u32 s%d, s%d, s%d", sT, sT, sT + 1)
    a("s_lshl_b32 s%d, s%d, 10", sT, sT)
    a("v_lshlrev_b32 v%d, 4, v%d", vHL, vL)
    a("v_add_u32 v%d, s%d, v%d", vHL, sT, vHL)
    a("v_and_b32 v%d, 31, v%d", vT + 1, vL)
    a("v_lshlrev_b32 v%d, 7, v%d", vT + 1, vT + 1)
    a("v_add_u32 v%d, s%d, v%d", vT + 1, sPJ, vT + 1)
    a("v_and_b32 v%d, 7, v%d", vT + 2, vL)
    a("v_xor_b32 v%d, v%d, v%d", vT + 2, vT + 2, vT)
    r0, r1 = (3 * SLOT, 3 * SLOT + 4096) if role == "c" else (2 * SLOT, SLOT + 4096)
    for G in range(4):
        a("v_xor_b32 v%d, %d, v%d", vT + 3, 2 * G, vT + 2)
        a("v_lshl_add_u32 v%d, v%d, 4, v%d", vT + 3, vT + 3, vT + 1)
        a("v_add_u32 v%d, 0x%x, v%d", vPW + G, r0, vT + 3)
        a("v_add_u32 v%d, 0x%x, v%d", vPW + 4 + G, r1, vT + 3)
    a("v_lshrrev_b32 v%d, 4, v0", vT)
    a("v_and_b32 v%d, 7, v%d", vT + 1, vT)
    a("v_and_b32 v%d, 7, v0", vT + 2)
    a("v_xor_b32 v%d, v%d, v%d", vT + 1, vT + 1, vT + 2)
    a("v_lshlrev_b32 v%d, 4, v%d", vT + 1, vT + 1)
    a("v_lshl_add_u32 v%d, v%d, 7, v%d", vT + 1, vT, vT + 1)
    a("v_bfe_u32 v%d, v0, 3, 1", vT + 2)
    a("v_lshlrev_b32 v%d, 12, v%d", vT + 3, vT + 2)
    a("v_add3_u32 v%d, v%d, v%d, s%d", vPR, vT + 1, vT + 3, sT + 4) if False else None
    a("v_add_u32 v%d, v%d, v%d", vPR, vT + 1, vT + 3)
    a("v_add_u32 v%d, 0x%x, v%d", vPR, 3 * SLOT, vPR)
    a("v_mul_u32_u24 v%d, 0x%x, v%d", vT + 3, SLOT - 4096, vT + 2)
    a("v_sub_u32 v%d, v%d, v%d", vPR + 1, vT + 1, vT + 3)
    a("v_add_u32 v%d, 0x%x, v%d", vPR + 1, 2 * SLOT, vPR + 1)
    a("v_and_b32 v%d, 15, v0", vT + 2)
    a("v_lshlrev_b32 v%d, 3, v%d", vT + 2, vT + 2)
    a("v_lshl_add_u32 v%d, v%d, 10, v%d", vOO, vT, vT + 2)
    a("s_lshl_b32 s%d, s%d, 15", sT, sMT)
    a("s_lshl_b32 s%d, s%d, 7", sT + 1, sNB)
    a("s_add_u32 s%d, s%d, s%d", sT, sT, sT + 1)
    a("v_add_u32 v%d, s%d, v%d", vOO, sT, vOO)

def place_own(i):
    if i < 3: return (2, i * 2048)
    if i < 7: return (0, (i - 3) * 2048)
    if i < 11: return (0, SLOT + (i - 7) * 2048)
    return (1, (i - 11) * 2048)
def place_comp(i):
    if i < 1: return (1, 6144)
    if i < 5: return (1, SLOT + (i - 1) * 2048)
    if i < 8: return (2, (i - 5) * 2048)
    if i < 12: return (0, (i - 8) * 2048)
    return (0, SLOT + (i - 12) * 2048)
def tr_reads(i, place):
    g, off = place(i)
    for t in range(2):
        r = vWA + 8 * i + 4 * t
        a("ds_read_b64_tr_b16 v[%d:%d], v%d offset:%d", r, r + 1, vTA + 2 * g + t, off)
        a("ds_read_b64_tr_b16 v[%d:%d], v%d offset:%d", r + 2, r + 3, vTA + 2 * g + t, off + 512)

a("v_xor_b32 v%d, v%d, v%d", vT + 3, vT + 2, vT + 1)
a("v_lshlrev_b32 v%d, 4, v%d", vT + 3, vT + 3)
a("v_lshl_add_u32 v%d, v%d, 10, v%d", vT + 3, vT, vT + 3)
a("s_lshl_b32 s%d, s%d, 17", sT, sMB)
a("s_lshl_b32 s%d, s%d, 15", sT + 1, sJ)
a("s_add_u32 s%d, s%d, s%d", sT, sT, sT + 1)
a("v_add_u32 v%d, s%d, v%d", vXO, sT, vT + 3)
a("v_xor_b32 v%d, 64, v%d", vXO + 1, vXO)
a("v_add_u32 v%d, 0x2000, v%d", vXO + 1, vXO + 1)
a("v_add_u32 v%d, 0x4000, v%d", vXO + 2, vXO)
a("v_add_u32 v%d, 0x4000, v%d", vXO + 3, vXO + 1)
a("v_and_b32 v%d, 2, v%d", vT + 3, vT)
a("v_xor_b32 v%d, v%d, v%d", vT + 3, vT + 3, vT + 2)
a("v_lshlrev_b32 v%d, 4, v%d", vT + 3, vT + 3)
a("v_mul_u32_u24 v%d, 3584, v%d", vT + 4, vT)
a("v_add_u32 v%d, v%d, v%d", vT + 3, vT + 3, vT + 4)
a("s_mul_i32 s%d, s%d, %d", sT, sJ, 16 * 3584)
a("s_lshl_b32 s%d, s%d, 7", sT + 1, sFB)
a("s_add_u32 s%d, s%d, s%d", sT, sT, sT + 1)
a("v_add_u32 v%d, s%d, v%d", vGO, sT, vT + 3)
a("v_add_u32 v%d, %d, v%d", vGO + 1, 8 * 3584, vGO)
a("v_xor_b32 v%d, 64, v%d", vUO, vGO)
a("v_xor_b32 v%d, 64, v%d", vUO + 1, vGO + 1)
a("s_lshl_b32 s%d, s%d, 12", sM0X, sJ)
a("s_lshl_b32 s%d, s%d, 11", sM0G, sJ)
a("s_add_u32 s%d, s%d, 16384", sM0G, sM0G)

def dma_stage(st):
    slot = (st % 4) * SLOT
    a("s_add_u32 s%d, s%d, %d", sWO, sROT, st)
    a("s_and_b32 s%d, s%d, 7", sWO, sWO)
    a("s_lshl_b32 s%d, s%d, 7", sXO, sWO)
    a("s_mul_i32 s%d, s%d, %d", sWO, sWO, 64 * 3584)
    seq = []
    for j in range(2):
        seq.append((sM0G, slot + j * 1024, vGO + j, sG, sWO, WNT))
        seq.append((sM0G, slot + 8192 + j * 1024, vUO + j, sU, sWO, WNT))
    for i in range(4):
        seq.append((sM0X, slot + i * 1024, vXO + i, sX, sXO, XNT))
    for base, off, vo, s, so, nt in seq:
        a("s_add_u32 m0, s%d, %d", base, off)
        a("s_nop 0")
        a("buffer_load_dwordx4 v%d, s[%d:%d], s%d offen%s lds", vo, s, s + 3, so, nt)

def wd_setup():
    a("v_lshrrev_b32 v%d, 3, v%d", vT, vL)
    a("v_and_b32 v%d, 7, v%d", vT + 2, vL)
    a("v_bfe_u32 v%d, v%d, 4, 1", vT + 3, vL)
    a("v_lshlrev_b32 v%d, 2, v%d", vT + 3, vT + 3)
    a("v_xor_b32 v%d, v%d, v%d", vT + 3, vT + 3, vT + 2)
    a("v_lshlrev_b32 v%d, 4, v%d", vT + 3, vT + 3)
    a("v_lshl_add_u32 v%d, v%d, 10, v%d", vT + 3, vT, vT + 3)
    a("s_mul_i32 s%d, s%d, %d", sT, sJ, 224 * 1024)
    a("s_lshl_b32 s%d, s%d, 7", sT + 1, sNB)
    a("s_add_u32 s%d, s%d, s%d", sT, sT, sT + 1)
    a("v_add_u32 v%d, s%d, v%d", vDO + 2, sT, vT + 3)
    a("v_add_u32 v%d, 0x2000, v%d", vDO + 3, vDO + 2)
    a("v_add_u32 v%d, 0x%x, v%d", vDO, 4 * 224 * 1024, vDO + 2)
    a("v_add_u32 v%d, 0x2000, v%d", vDO + 1, vDO)

def wd_dma(i, own):
    g, off = (place_own if own else place_comp)(i)
    base = sPE if g == 2 else sPJ
    off += 0x10000 if g == 1 else 0
    a("s_lshl_b32 s%d, s%d, 4", sT, sKH + i)
    for b in range(2):
        a("s_add_u32 m0, s%d, %d", base, off + b * 1024)
        a("s_nop 0")
        a("buffer_load_dwordx4 v%d, s[%d:%d], s%d offen%s lds", vDO + (0 if own else 2) + b, sD, sD + 3, sT, DNT)

a("s_waitcnt lgkmcnt(0)")
a("s_cmp_ge_u32 s2, 224")
a("s_cbranch_scc1 L_l_idle")
LA = OPT["la"]
for st in range(LA):
    dma_stage(st)
stamp(1)
rot2_table()
wd_setup()
issued = LA
extra = 0
for st in range(NST):
    a("s_waitcnt vmcnt(%d)", (issued - st - 1) * 8 + extra)
    a("s_barrier")
    if st in (0, 1, 4, 7):
        stamp({0: 2, 1: 3, 4: 4, 7: 5}[st])
    if issued < NST:
        dma_stage(issued)
        issued += 1
    elif st == NST - 2 or (st == NST - 3 and LA == 3):
        if extra == 0:
            for i in range(3):
                wd_dma(i, True)
            extra = 6
        else:
            for i in range(3, 7):
                wd_dma(i, True)
            extra += 8
done_own = 3 if extra == 6 else 7
a("s_branch L_l_wd%d", done_own)
a.label("L_l_idle")
rot2_table()
wd_setup()
for i in range(done_own):
    wd_dma(i, True)
a.label("L_l_wd%d" % done_own)
for i in range(done_own, 14):
    wd_dma(i, True)
wd_dma(0, False)
p2_addr_setup("l")
a("s_waitcnt vmcnt(%d)", 22 + 2)
for i in range(3):
    tr_reads(i, place_own)
a("s_waitcnt lgkmcnt(0)")
for i in range(5, 8):
    wd_dma(i, False)
a("s_waitcnt vmcnt(%d)", 14 + 2 + 6)
for i in range(3, 7):
    tr_reads(i, place_own)
    if i == 4:
        a("s_waitcnt lgkmcnt(4)")
a("s_waitcnt lgkmcnt(0)")
for i in range(8, 12):
    wd_dma(i, False)
a("s_cmp_ge_u32 s2, 224")
a("s_cbranch_scc1 L_l_s3ok")
a("v_mov_b32 v%d, %d", vT + 6, MISC)
a("s_mov_b32 s%d, 0", sCNT)
a.label("L_l_s3wait")
a("ds_read_b32 v%d, v%d offset:4", vT, vT + 6)
a("s_add_u32 s%d, s%d, 1", sCNT, sCNT)
a("s_waitcnt lgkmcnt(0)")
a("v_readfirstlane_b32 s%d, v%d", sT + 1, vT)
a("s_cmp_lt_u32 s%d, 0x400000", sCNT)
a("s_cbranch_scc0 L_l_s3ok")
a("s_cmp_lt_u32 s%d, 256", sT + 1)
a("s_cbranch_scc1 L_l_s3wait")
a.label("L_l_s3ok")
for i in range(1, 5):
    wd_dma(i, False)
a("s_waitcnt vmcnt(%d)", 6 + 2 + 6 + 8 + 8)
for i in range(7, 11):
    tr_reads(i, place_own)
    if i == 8:
        a("s_waitcnt lgkmcnt(4)")
a("s_waitcnt lgkmcnt(0)")
for i in range(12, 14):
    wd_dma(i, False)
a("s_waitcnt vmcnt(%d)", 2 + 6 + 8 + 8 + 4)
for i in range(11, 14):
    tr_reads(i, place_own)
stamp(6)
a("s_waitcnt vmcnt(0) lgkmcnt(0)")
stamp(7)
a("s_cmp_eq_u32 s%d, 4", sW)
a("s_cbranch_scc0 L_l_join")
a("s_lshr_b32 s%d, s%d, 2", sT, sMT)
a("s_lshl_b32 s%d, s%d, 5", sT + 1, sT)
a("v_mov_b32 v%d, s%d", vT + 2, sT + 1)
a("s_lshl_b32 s%d, s%d, 12", sT, sT)
a("s_add_u32 s%d, s%d, 0x%x", sT, sT, FLAG_OFF)
a("v_lshlrev_b32 v%d, 7, v%d", vT + 1, vL)
a("s_mov_b32 s%d, 0", sCNT)
a("s_mov_b64 exec, 1")
a.label("L_poll0")
a("global_load_dword v%d, v%d, s[%d:%d] sc1", vT, vT + 2, sDBG, sDBG + 1)
a("s_add_u32 s%d, s%d, 1", sCNT, sCNT)
a("s_waitcnt vmcnt(0)")
a("v_cmp_gt_u32 vcc, 28, v%d", vT)
a("s_cmp_lt_u32 s%d, 0x40000", sCNT)
a("s_cbranch_scc0 L_poll0_done")
a("s_cmp_eq_u64 vcc, 0")
a("s_cbranch_scc1 L_poll0_done")
a("s_sleep 8")
a("s_branch L_poll0")
a.label("L_poll0_done")
a("s_mov_b64 exec, 0xfffffff")
a.label("L_poll")
a("buffer_load_dword v%d, v%d, s[%d:%d], s%d offen sc1", vT, vT + 1, sH, sH + 3, sT)
a("s_add_u32 s%d, s%d, 1", sCNT, sCNT)
a("s_waitcnt vmcnt(0)")
a("v_cmp_ne_u32 vcc, 1, v%d", vT)
a("s_cmp_lt_u32 s%d, 0x40000", sCNT)
a("s_cbranch_scc0 L_poll_done")
a("s_cmp_eq_u64 vcc, 0")
a("s_cbranch_scc1 L_poll_done")
if OPT["sleep"]:
    a("s_sleep %d", OPT["sleep"])
a("s_branch L_poll")
a.label("L_poll_done")
a("s_mov_b64 exec, -1")
a.label("L_l_join")
stamp(8)
a("s_barrier")
stamp(9)
for i in range(14):
    r = vHB + 4 * i
    a("buffer_load_dwordx4 v[%d:%d], v%d, s[%d:%d], s%d offen sc1", r, r + 3, vHL, sH, sH + 3, sKH + i)

a("s_branch L_p2")

a.label("L_compute")
a("s_waitcnt lgkmcnt(0)")
a("s_cmp_ge_u32 s2, 224")
a("s_cbranch_scc1 L_c_p2")
a("s_lshl_b32 s%d, s%d, 12", sT, sMB)
a("s_lshl_b32 s%d, s%d, 7", sT + 1, sFB)
a("s_add_u32 s%d, s%d, s%d", sFO, sT, sT + 1)
a("s_add_u32 s%d, s%d, 0x%x", sFO, sFO, FLAG_OFF)
a("s_cmp_lg_u32 s%d, 0", sW)
a("s_cbranch_scc1 L_c_noclear")
a("s_mov_b64 exec, 1")
a("v_mov_b32 v%d, 0", vT + 3)
a("v_mov_b32 v%d, 1", vT + 4)
a("s_lshl_b32 s%d, s%d, 5", sT, sMB)
a("v_mov_b32 v%d, s%d", vT + 5, sT)
a("buffer_store_dword v%d, off, s[%d:%d], s%d sc1", vT + 3, sH, sH + 3, sFO)
a("s_waitcnt vmcnt(0)")
a("global_atomic_add v%d, v%d, s[%d:%d] sc1", vT + 5, vT + 4, sDBG, sDBG + 1)
a("s_mov_b64 exec, -1")
a.label("L_c_noclear")
a("v_mov_b32 v%d, %d", vT + 3, MISC)
a("v_mov_b32 v%d, 0", vT + 4)
a("v_mov_b32 v%d, 0", vT + 5)
a("ds_write_b64 v%d, v[%d:%d]", vT + 3, vT + 4, vT + 5)
a("s_and_b32 s%d, s%d, 1", sT, sW)
a("s_lshr_b32 s%d, s%d, 1", sT + 1, sW)
a("v_and_b32 v%d, 31, v%d", vT, vL)
a("v_lshlrev_b32 v%d, 7, v%d", vT, vT)
a("s_lshl_b32 s%d, s%d, 13", sT + 2, sT)
a("v_add_u32 v%d, s%d, v%d", vT, sT + 2, vT)
a("v_lshrrev_b32 v%d, 5, v%d", vT + 1, vL)
a("v_bfe_u32 v%d, v%d, 1, 3", vT + 2, vL)
a("v_xor_b32 v%d, v%d, v%d", vT + 2, vT + 2, vT + 1)
for s in range(4):
    a("v_xor_b32 v%d, %d, v%d", vT + 3, 2 * s, vT + 2)
    a("v_lshl_add_u32 v%d, v%d, 4, v%d", vBA + s, vT + 3, vT)
    a("v_add_u32 v%d, 0x10000, v%d", vBA + 4 + s, vBA + s)
a("v_bfe_u32 v%d, v%d, 2, 2", vT, vL)
a("v_lshl_add_u32 v%d, v%d, 3, v%d", vT, vT + 1, vT)
a("v_lshlrev_b32 v%d, 7, v%d", vT, vT)
a("v_bfe_u32 v%d, v%d, 4, 1", vT + 2, vL)
a("v_lshl_add_u32 v%d, v%d, 13, v%d", vT, vT + 2, vT)
a("v_bfe_u32 v%d, v%d, 1, 1", vT + 3, vL)
a("v_lshl_add_u32 v%d, v%d, 3, v%d", vT, vT + 3, vT)
a("v_add_u32 v%d, 16384, v%d", vT, vT)
a("v_bfe_u32 v%d, v%d, 3, 1", vT + 3, vL)
a("v_lshlrev_b32 v%d, 1, v%d", vT + 3, vT + 3)
a("v_lshl_add_u32 v%d, v%d, 2, v%d", vT + 3, vT + 2, vT + 3)
a("v_and_b32 v%d, 1, v%d", vT + 4, vL)
a("s_lshl_b32 s%d, s%d, 2", sT + 2, sT + 1)
a("v_add_u32 v%d, s%d, v%d", vT + 4, sT + 2, vT + 4)
a("v_xor_b32 v%d, v%d, v%d", vT + 4, vT + 4, vT + 3)
a("v_lshl_add_u32 v%d, v%d, 4, v%d", vAA, vT + 4, vT)
a("v_xor_b32 v%d, 32, v%d", vAA + 1, vAA)
a("v_add_u32 v%d, 0x10000, v%d", vAA + 2, vAA)
a("v_add_u32 v%d, 0x10000, v%d", vAA + 3, vAA + 1)
a("s_lshl_b32 s%d, s%d, 1", sT + 2, sMB)
a("s_add_u32 s%d, s%d, s%d", sT + 2, sT + 2, sT)
a("s_mul_i32 s%d, s%d, 224", sT + 2, sT + 2)
a("s_lshl_b32 s%d, s%d, 1", sT + 3, sFB)
a("s_add_u32 s%d, s%d, s%d", sT + 3, sT + 3, sT + 1)
a("s_lshl_b32 s%d, s%d, 1", sT + 3, sT + 3)
a("s_add_u32 s%d, s%d, s%d", sT + 2, sT + 2, sT + 3)
a("s_lshl_b32 s%d, s%d, 10", sT + 2, sT + 2)
a("v_lshlrev_b32 v%d, 4, v%d", vHO, vL)
a("v_add_u32 v%d, s%d, v%d", vHO, sT + 2, vHO)
a("s_mov_b32 s%d, 0xbfb8aa3b", sC)
a("s_mov_b32 s%d, 0xbfb8aa3b", sC + 1)
rot2_table()
p2_addr_setup("c")

def frag_reads(st, s, fs):
    slot = st % 4
    grp = slot // 2
    so = (slot % 2) * SLOT
    f = vFR + 16 * fs
    g0 = ["ds_read_b64_tr_b16 v[%d:%d], v%d offset:%d" % (f, f + 1, vAA + 2 * grp, so + 2048 * s),
          "ds_read_b64_tr_b16 v[%d:%d], v%d offset:%d" % (f + 2, f + 3, vAA + 2 * grp, so + 2048 * s + 512),
          "ds_read_b128 v[%d:%d], v%d offset:%d" % (f + 8, f + 11, vBA + 4 * grp + s, so)]
    g1 = ["ds_read_b128 v[%d:%d], v%d offset:%d" % (f + 12, f + 15, vBA + 4 * grp + s, so + 4096),
          "ds_read_b64_tr_b16 v[%d:%d], v%d offset:%d" % (f + 4, f + 5, vAA + 2 * grp + 1, so + 2048 * s),
          "ds_read_b64_tr_b16 v[%d:%d], v%d offset:%d" % (f + 6, f + 7, vAA + 2 * grp + 1, so + 2048 * s + 512)]
    return g0, g1
def mfma(ft, mt, fs, first):
    f = vFR + 16 * fs
    c = vAC + 16 * (2 * ft + mt)
    cs = "0" if first else "v[%d:%d]" % (c, c + 15)
    a("v_mfma_f32_32x32x16_bf16 v[%d:%d], v[%d:%d], v[%d:%d], %s", c, c + 15, f + 4 * ft, f + 4 * ft + 3,
      f + 8 + 4 * mt, f + 8 + 4 * mt + 3, cs)

a("v_mov_b32 v%d, %d", vT + 6, MISC)
a("v_mov_b32 v%d, 1", vT + 7)
stamp(1)
a("s_waitcnt lgkmcnt(0)")
a("s_barrier")
stamp(2)
g0, g1 = frag_reads(0, 0, 0)
for r in g0 + g1:
    a(r)
n = 0
for st in range(NST):
    for s in range(4):
        fs = n & 1
        last = (st == NST - 1 and s == 3)
        a("s_waitcnt lgkmcnt(0)")
        if s == 3 and not last:
            a("s_barrier")
            if st in (0, 3, 6):
                stamp(3 + st // 3)
        if last:
            a("ds_add_u32 v%d, v%d offset:4", vT + 6, vT + 7)
        if not last:
            nst, ns = (st, s + 1) if s < 3 else (st + 1, 0)
            g0, g1 = frag_reads(nst, ns, fs ^ 1)
        else:
            g0, g1 = [], []
        first = (n == 0)
        mfma(0, 0, fs, first)
        for r in g0: a(r)
        mfma(0, 1, fs, first)
        for r in g1: a(r)
        mfma(1, 0, fs, first)
        mfma(1, 1, fs, first)
        n += 1
stamp(6)
a("s_mov_b32 s%d, %d", sT, 112 * 1024)
a("s_nop 7")
for ft in range(2):
    for mt in range(2):
        c = vAC + 16 * (2 * ft + mt)
        e = vE + 16 * ((2 * ft + mt) & 1)
        for j in range(8):
            a("v_mul_f32 v%d, s%d, v%d", e + j, sC, c + j)
        for j in range(8):
            a("v_exp_f32 v%d, v%d", e + j, e + j)
        for j in range(8):
            a("v_mul_f32 v%d, v%d, v%d", c + j, c + j, c + 8 + j)
        for j in range(8):
            a("v_add_f32 v%d, 1.0, v%d", e + j, e + j)
        for j in range(8):
            a("v_rcp_f32 v%d, v%d", e + j, e + j)
        a("s_nop 0")
        for j in range(8):
            a("v_mul_f32 v%d, v%d, v%d", c + j, c + j, e + j)
        for j in range(4):
            a("v_cvt_pk_bf16_f32 v%d, v%d, v%d", e + 8 + j, c + 2 * j, c + 2 * j + 1)
        a("buffer_store_dwordx4 v[%d:%d], v%d, s[%d:%d], %s offen offset:%d sc1", e + 8, e + 11, vHO, sH, sH + 3,
          "0" if mt == 0 else "s%d" % sT, ft * 1024)
stamp(7)
a("s_waitcnt vmcnt(0)")
stamp(8)
a("s_mov_b64 s[%d:%d], exec", sT + 2, sT + 3)
a("s_mov_b64 exec, 1")
a("ds_add_rtn_u32 v%d, v%d, v%d", vT, vT + 6, vT + 7)
a("s_waitcnt lgkmcnt(0)")
a("v_readfirstlane_b32 s%d, v%d", sT + 1, vT)
a("s_nop 3")
a("s_cmp_eq_u32 s%d, 3", sT + 1)
a("s_cbranch_scc0 L_c_noflag")
a("buffer_store_dword v%d, off, s[%d:%d], s%d sc1", vT + 7, sH, sH + 3, sFO)
a.label("L_c_noflag")
a("s_mov_b64 exec, s[%d:%d]", sT + 2, sT + 3)
a("s_branch L_c_join")
a.label("L_c_p2")
if OPT["cpf"]:
    a("s_getpc_b64 s[%d:%d]", sT, sT + 1)
    a.label("L_pc")
    a("s_sub_u32 s%d, s%d, L_pc-%s", sT, sT, NAME)
    a("s_subb_u32 s%d, s%d, 0", sT + 1, sT + 1)
    a("v_lshlrev_b32 v%d, 7, v0", vT + 3)
    a("s_mov_b32 s%d, L_end-%s", sT + 2, NAME)
    a("v_cmp_gt_u32 vcc, s%d, v%d", sT + 2, vT + 3)
    a("s_and_saveexec_b64 s[%d:%d], vcc", sT + 2, sT + 3)
    a("s_cbranch_execz L_nopf")
    a("global_load_dword v%d, v%d, s[%d:%d]", vT + 4, vT + 3, sT, sT + 1)
    a.label("L_nopf")
    a("s_mov_b64 exec, -1")
rot2_table()
p2_addr_setup("c")
a.label("L_c_join")
a("s_barrier")
stamp(9)
for i in range(14):
    r = vHB + 4 * i
    a("buffer_load_dwordx4 v[%d:%d], v%d, s[%d:%d], s%d offen sc1", r, r + 3, vHL, sH, sH + 3, sKH + i)
for i in range(14):
    tr_reads(i, place_comp)
    if i % 2 == 1:
        a("s_waitcnt lgkmcnt(4)")
a("s_waitcnt lgkmcnt(0)")

a.label("L_p2")
for i in range(14):
    a("s_waitcnt vmcnt(%d)", 13 - i)
    for t in range(2):
        c = vA2 + 16 * t
        cs = "0" if i == 0 else "v[%d:%d]" % (c, c + 15)
        a("v_mfma_f32_32x32x16_bf16 v[%d:%d], v[%d:%d], v[%d:%d], %s", c, c + 15, vWA + 8 * i + 4 * t, vWA + 8 * i + 4 * t + 3,
          vHB + 4 * i, vHB + 4 * i + 3, cs)
stamp(10)
a("s_nop 7")
a("s_nop 3")
for t in range(2):
    for G in range(4):
        r = vA2 + 16 * t + 4 * G
        a("ds_write_b128 v%d, v[%d:%d]", vPW + 4 * t + G, r, r + 3)
a("s_waitcnt lgkmcnt(0)")
a("s_barrier")
R = 32
for p in range(8):
    a("ds_read_b128 v[%d:%d], v%d offset:%d", R + 4 * p, R + 4 * p + 3, vPR + (p >> 2), (p & 3) * 8192)
for lvl, (w, pairs) in enumerate([(6, [(0, 1)]), (4, [(2, 3)]), (2, [(4, 5), (0, 2)]), (0, [(6, 7), (4, 6), (0, 4)])]):
    a("s_waitcnt lgkmcnt(%d)", w)
    for x, y in pairs:
        for j in range(4):
            a("v_add_f32 v%d, v%d, v%d", R + 4 * x + j, R + 4 * x + j, R + 4 * y + j)
a("v_cvt_pk_bf16_f32 v%d, v%d, v%d", R + 4, R, R + 1)
a("v_cvt_pk_bf16_f32 v%d, v%d, v%d", R + 5, R + 2, R + 3)
a("buffer_store_dwordx2 v[%d:%d], v%d, s[%d:%d], 0 offen", R + 4, R + 5, vOO, sO, sO + 3)
if STAMP:
    a("s_waitcnt vmcnt(0)")
    stamp(11)
    a("s_waitcnt lgkmcnt(0)")
    vt = 40
    a("v_mov_b32 v%d, 0", vt)
    a("v_mov_b32 v%d, 0", vt + 1)
    for i in range(NSTAMP):
        a("v_writelane_b32 v%d, s%d, %d", vt, SST + 2 * i, i)
        a("v_writelane_b32 v%d, s%d, %d", vt + 1, SST + 2 * i + 1, i)
    if OPT.get("dbgst"):
        sel = [0, 2, 6, 8, 9, 10, 11]
        a("v_mov_b32 v%d, 0", vt + 4)
        a("s_not_b32 s%d, s%d", SST, SST)
        for k, i in enumerate(sel):
            a("v_writelane_b32 v%d, s%d, %d", vt + 4, SST + 2 * i, k)
        a("s_lshr_b32 s%d, s%d, 2", sT + 1, sW)
        a("s_lshl_b32 s%d, s%d, 5", sT + 1, sT + 1)
        a("s_add_u32 s%d, s%d, 4", sT + 1, sT + 1)
        a("v_lshlrev_b32 v%d, 2, v%d", vt + 5, vL)
        a("v_add_u32 v%d, s%d, v%d", vt + 5, sT + 1, vt + 5)
        a("s_cmp_lg_u32 s%d, 0", sJ)
        a("s_cbranch_scc1 L_end")
        a("s_mov_b64 exec, 0x7f")
        a("global_atomic_umax v%d, v%d, s[%d:%d] sc1", vt + 5, vt + 4, sDBG, sDBG + 1)
        a("s_branch L_end")
    a("s_lshl_b32 s%d, s2, 7", sT)
    a("s_lshr_b32 s%d, s%d, 2", sT + 1, sW)
    a("s_lshl_b32 s%d, s%d, 16", sT + 1, sT + 1)
    a("s_add_u32 s%d, s%d, s%d", sT, sT, sT + 1)
    a("s_add_u32 s%d, s%d, 0x%x", sT, sT, STAMP_OFF)
    a("v_lshlrev_b32 v%d, 3, v%d", vt + 2, vL)
    a("v_add_u32 v%d, s%d, v%d", vt + 2, sT, vt + 2)
    a("s_cmp_lg_u32 s%d, 0", sJ)
    a("s_cbranch_scc1 L_end")
    a("s_mov_b64 exec, 0xffff")
    a("global_store_dwordx2 v%d, v[%d:%d], s[%d:%d]", vt + 2, vt, vt + 1, sWS, sWS + 1)
a.label("L_end")
a("s_endpgm")

NAME = "standalone__swiglu_ffn__sampling_kernel"
t = HEADER
t += "; @launch grid=(256,1,1) block=(512,1,1) lds=163840\n"
t += '.amdgcn_target "amdgcn-amd-amdhsa--gfx950"\n.text\n'
t += kernel_head(NAME) + a.text()
t += '.section .rodata,"a"\n.p2align 6\n'
t += kernel_desc(NAME, 256, 102, 256)
open(sys.argv[1], "w").write(t)
```
